```python
import torch

def _softmax(x, axis=-1):
    return torch.softmax(x, dim=axis)
def _gelu(x):
    return torch.nn.functional.gelu(x, approximate="tanh")
def _silu(x):
    return torch.nn.functional.silu(x)
def _sigmoid(x):
    return torch.sigmoid(x)
def _layernorm(x, axis=-1, eps=1e-5):
    m = x.mean(dim=axis, keepdim=True)
    v = x.var(dim=axis, keepdim=True, unbiased=False)
    return (x - m) / torch.sqrt(v + eps)
def _scatter_add(tgt, idx, src, axis=0):
    return tgt.clone().index_add_(axis, idx, src)
def _segment_sum(src, seg, n):
    out = torch.zeros((n,) + src.shape[1:], dtype=src.dtype)
    return out.index_add_(0, seg, src)
def _pad(x, pw):
    flat = tuple(v for pair in reversed(pw) for v in pair)
    return torch.nn.functional.pad(x, flat)

kernel_name = 'standalone__linear_kernel_rfa__decode'

def setup_inputs():

    _w = (lambda a: (lambda t: t.to(torch.bfloat16) if t.is_floating_point() else t)(torch.as_tensor(a)))
    B, H, Sq, Sk, D, M = 4, 32, 1, 4096, 128, 8
    return {
        "q": _w((lambda *s: torch.randn(*s, dtype=torch.bfloat16) * 0.05)(B, H, Sq, D)),
        "k": _w((lambda *s: torch.randn(*s, dtype=torch.bfloat16) * 0.4)(B, H, Sk, D)),
        "v": _w((lambda *s: torch.randn(*s, dtype=torch.bfloat16) * 0.4)(B, H, Sk, D)),
        "omega": _w((lambda *s: torch.randn(*s, dtype=torch.bfloat16) * 0.8)(M, D)),
    }

def reference(q, k, v, omega):
    d = q.shape[-1]
    m = omega.shape[0]
    scale = float(d) ** -0.25
    qs = q * scale
    ks = k * scale
    q_proj = torch.einsum("bhsd,md->bhsm", qs, omega)
    k_proj = torch.einsum("bhsd,md->bhsm", ks, omega)
    q_sq = 0.5 * torch.einsum("bhsd,bhsd->bhs", qs, qs)[..., None]
    k_sq = 0.5 * torch.einsum("bhsd,bhsd->bhs", ks, ks)[..., None]
    inv_sqrt_m = float(m) ** -0.5
    phi_q = torch.exp(q_proj - q_sq) * inv_sqrt_m + 1e-6
    phi_k = torch.exp(k_proj - k_sq) * inv_sqrt_m + 1e-6
    kv = torch.einsum("bhsm,bhsd->bhmd", phi_k, v)
    z  = torch.einsum("bhsm->bhm", phi_k)
    num = torch.einsum("bhqm,bhmd->bhqd", phi_q, kv)
    den = torch.einsum("bhqm,bhm->bhq", phi_q, z)[..., None] + 1e-6
    return num / den
```

```python
import sys, math, struct, argparse

def f2u(x):
    return struct.unpack('<I', struct.pack('<f', x))[0]

def gen(WK=(5,), WV=(5,), NB=8, pol='nt', stamp=False, trace=False, split=16, xch='swap', hv=3, name='standalone__linear_kernel_rfa__decode'):
    L = []
    A = L.append
    NW = 4
    NWG = 256
    W = max(max(WK), max(WV))
    assert W <= NB - 2
    NIT = 128 // NB
    scale = 128.0 ** -0.25
    c_sq = -0.5 * scale
    c_e = scale * math.log2(math.e)
    c_m = 8.0 ** -0.5
    NP = NB // 4
    LDS_DEN = 32768 + NP * 256
    lds_bytes = LDS_DEN + 16
    tmask = 0
    for b in range(14, 21):
        if b != split: tmask |= 1 << b
    tinc = tmask & -tmask
    vLane, vOffA, vOffB, vSq, vT, vDen, vCsq, vPq, vPqe, vLds = range(10)
    vY = 10
    vOm = 12
    vSel = 20
    vD = 28
    vA = 32
    vAcc0 = 36
    vAcc1 = 40
    vP = 44
    vVA, vVB = 46, 47
    vQ = 48
    vTr = 56
    vBuf = 60
    nvgpr = vBuf + NB * 4
    def B(n): return vBuf + (n % NB) * 4
    def r4(b): return f'v[{b}:{b+3}]'
    def r2(b): return f'v[{b}:{b+1}]'
    sS, sQ, sOm = 20, 28, 32
    sVb = 24
    sOff, sCnt, sHead, sSide, sWave, sCe = 36, 37, 38, 39, 40, 41
    P = (' ' + pol) if pol else ''
    nthreads = 320 if xch == 'swap' else 256

    A(f'; @launch grid=({NWG},1,1) block=({nthreads},1,1) lds={lds_bytes}')
    A('.amdgcn_target "amdgcn-amd-amdhsa--gfx950"')
    A('.text')
    A(f'.globl {name}_kernel')
    A('.p2align 8')
    A(f'.type {name}_kernel,@function')
    A(f'{name}_kernel:')
    A(f'  s_cmp_ge_u32 s2, {NWG}')
    A('  s_cbranch_scc1 L_end')
    A('  s_load_dwordx8 s[4:11], s[0:1], 0        ; q k v omega')
    A('  s_load_dwordx4 s[12:15], s[0:1], 32')
    A('  s_load_dwordx2 s[16:17], s[0:1], 48      ; ws')
    if stamp:
        A('  s_memrealtime s[50:51]')
    A(f'  v_lshrrev_b32 v{vT}, 6, v0')
    A(f'  v_and_b32 v{vLane}, 63, v0               ; lane')
    A(f'  v_readfirstlane_b32 s{sWave}, v{vT}')
    A(f'  s_lshr_b32 s{sHead}, s2, 1')
    A(f'  s_and_b32 s{sSide}, s2, 1')
    if xch == 'swap':
        A(f'  s_cmp_eq_u32 s{sWave}, 4')
        A('  s_cbranch_scc1 L_helper')
    A(f'  v_lshrrev_b32 v{vSq}, 4, v{vLane}')
    A(f'  v_lshlrev_b32 v{vSq}, 5, v{vSq}            ; slab*32')
    A(f'  v_and_b32 v{vY}, 1, v{vLane}')
    A(f'  v_lshl_add_u32 v{vPq}, v{vY}, 4, v{vSq}')
    A(f'  v_bfe_u32 v{vY}, v{vLane}, 1, 1')
    A(f'  v_lshl_add_u32 v{vOffA}, v{vY}, 10, v{vPq}')
    A(f'  v_bfe_u32 v{vY}, v{vLane}, 2, 2')
    A(f'  v_lshl_add_u32 v{vOffA}, v{vY}, 8, v{vOffA}')
    A(f'  v_lshl_add_u32 v{vOffA}, v{vT}, 12, v{vOffA}')
    A(f'  v_add_u32 v{vOffB}, 128, v{vOffA}')
    A(f'  v_bfe_u32 v{vY}, v{vLane}, 3, 1')
    A(f'  v_lshl_add_u32 v{vPqe}, v{vY}, 4, v{vSq}')
    A(f'  v_and_b32 v{vY}, 7, v{vLane}')
    A(f'  v_lshl_add_u32 v{vPqe}, v{vY}, 8, v{vPqe}')
    A(f'  s_lshl_b32 s42, s{sHead}, 20')
    A(f'  s_lshl_b32 s43, s{sSide}, {split}')
    A(f'  s_sub_u32 s{sS+2}, 0x100000, s43')
    A(f'  s_add_u32 s42, s42, s43')
    A(f'  s_lshl_b32 s43, s{sHead}, 8')
    A(f'  s_mov_b32 s{sS+3}, 0x20000')
    A(f'  s_mov_b32 s{sQ+2}, 256')
    A(f'  s_mov_b32 s{sQ+3}, 0x20000')
    A(f'  s_mov_b32 s{sOm+2}, 2048')
    A(f'  s_mov_b32 s{sOm+3}, 0x20000')
    A(f'  s_mov_b32 s{sOff}, 0')
    A('  s_waitcnt lgkmcnt(0)')
    A(f'  s_add_u32 s{sS}, s6, s42')
    A(f'  s_addc_u32 s{sS+1}, s7, 0')
    A(f'  s_mov_b32 s{sOm}, s10')
    A(f'  s_mov_b32 s{sOm+1}, s11')
    A(f'  s_add_u32 s{sQ}, s4, s43')
    A(f'  s_addc_u32 s{sQ+1}, s5, 0')
    A(f'  buffer_load_dwordx4 {r4(vOm)}, v{vPqe}, s[{sOm}:{sOm+3}], 0 offen')
    A(f'  buffer_load_dwordx4 {r4(vOm+4)}, v{vPqe}, s[{sOm}:{sOm+3}], 0 offen offset:128')
    A(f'  buffer_load_dwordx4 {r4(vQ)}, v{vPq}, s[{sQ}:{sQ+3}], 0 offen')
    A(f'  buffer_load_dwordx4 {r4(vQ+4)}, v{vPq}, s[{sQ}:{sQ+3}], 0 offen offset:128')
    def issue(n, phase=None):
        off = ' offset:2048' if n & 2 else ''
        A(f'  buffer_load_dwordx4 {r4(B(n))}, v{vOffB if n & 1 else vOffA}, s[{sS}:{sS+3}], s{sOff} offen{off}{P}')
        cnt = 1
        if n % 4 == 3:
            A(f'  s_or_b32 s{sOff}, s{sOff}, {hex(~tmask & 0xffffffff)}')
            A(f'  s_add_u32 s{sOff}, s{sOff}, 1')
            A(f'  s_and_b32 s{sOff}, s{sOff}, {hex(tmask)}')
            cnt += 3
        if n % NB == NB - 1 and phase == 'K':
            A(f'  s_bitcmp1_b32 s{sOff}, 20')
            A('  s_cbranch_scc1 L_tov')
            A('L_tov_back:')
            cnt += 2
        if n % NB == NB - 1 and phase == 'V':
            A(f'  s_bitcmp1_b32 s{sOff}, 20')
            A(f'  s_cselect_b32 s{sS+2}, 0, s{sS+2}')
            cnt += 2
        return cnt
    for n in range(W):
        issue(n)
    A(f'  s_add_u32 s{sVb}, s8, s42')
    A(f'  s_addc_u32 s{sVb+1}, s9, 0')
    A(f'  v_lshlrev_b32 v{vVA}, 4, v{vLane}')
    A(f'  v_lshl_add_u32 v{vVA}, v{vT}, 12, v{vVA}')
    A(f'  v_add_u32 v{vVB}, 0x400, v{vVA}')
    A(f'  v_lshlrev_b32 v{vLds}, 2, v{vLane}')
    A(f'  v_lshl_add_u32 v{vLds}, v{vT}, 13, v{vLds}')
    A(f'  v_mov_b32 v{vCsq}, 0x{f2u(c_sq):08x}')
    A(f'  s_mov_b32 s{sCe}, 0x{f2u(c_e):08x}')
    A(f'  v_mov_b32 v{vDen}, 0')
    for i in range(4):
        A(f'  v_mov_b32 v{vAcc0+i}, 0')
        A(f'  v_mov_b32 v{vAcc1+i}, 0')
    A(f'  v_and_b32 v{vY}, 1, v{vLane}')
    A(f'  v_cmp_eq_u32 vcc, 1, v{vY}')
    A(f'  v_mov_b32 v{vD}, 0x0c0c0100')
    A(f'  v_mov_b32 v{vD+1}, 0x01000c0c')
    A(f'  v_cndmask_b32 v{vD}, v{vD}, v{vD+1}, vcc')
    A(f'  v_mov_b32 v{vD+1}, 0x0c0c0302')
    A(f'  v_mov_b32 v{vD+2}, 0x03020c0c')
    A(f'  v_cndmask_b32 v{vD+1}, v{vD+1}, v{vD+2}, vcc')
    A(f'  v_mov_b32 v{vD+2}, 0x0c0c0c0c')
    A(f'  v_bfe_u32 v{vY}, v{vLane}, 1, 2')
    for j in range(4):
        A(f'  v_cmp_eq_u32 vcc, {j}, v{vY}')
        A('  s_nop 1')
        A(f'  v_cndmask_b32 v{vSel+j}, v{vD+2}, v{vD}, vcc')
        A(f'  v_cndmask_b32 v{vSel+4+j}, v{vD+2}, v{vD+1}, vcc')
    def dots(k, first):
        for i in range(4):
            A(f'  v_dot2_f32_bf16 v{vSq}, v{k+i}, v{k+i}, ' + ('0' if first and i == 0 else f'v{vSq}'))
    def mm(k0, k1):
        A('  s_nop 2')
        A(f'  v_mfma_f32_16x16x4_f32 {r4(vD)}, v{vSq}, v{vCsq}, 0')
        A(f'  v_mfma_f32_16x16x32_bf16 {r4(vD)}, {r4(k0)}, {r4(vOm)}, {r4(vD)}')
        A(f'  v_mfma_f32_16x16x32_bf16 {r4(vD)}, {r4(k1)}, {r4(vOm+4)}, {r4(vD)}')
    def ex():
        A(f'  v_add_f32_dpp v{vT}, v{vD+1}, v{vD} row_ror:8 row_mask:0xf bank_mask:0x3')
        A(f'  v_add_f32_dpp v{vT}, v{vD+2}, v{vD+3} row_ror:8 row_mask:0xf bank_mask:0xc')
        A(f'  v_mul_f32 v{vT}, s{sCe}, v{vT}')
        A(f'  v_exp_f32 v{vT}, v{vT}')
        A('  s_nop 0')
    A(f'  s_waitcnt vmcnt({W})')
    dots(vQ, True); dots(vQ+4, False); mm(vQ, vQ+4)
    A('  s_nop 7')
    ex()
    A(f'  v_mov_b32 v{vY}, 0x{f2u(1e-6):08x}')
    A(f'  v_fmac_f32 v{vY}, 0x{f2u(c_m):08x}, v{vT}     ; phi_q[m]')
    A(f'  v_mul_f32 v{vPq}, 0x{f2u(c_m):08x}, v{vY}')
    A(f'  v_mul_f32 v{vPqe}, 0x{f2u(1e-6):08x}, v{vY}')
    def wait(n, Ws):
        A(f'  s_waitcnt vmcnt({Ws[n % len(Ws)]-1})')
    def tr():
        if trace:
            A('  s_memrealtime s[56:57]\n  s_waitcnt lgkmcnt(0)')
            A(f'  s_mov_b32 m0, s58\n  s_add_u32 s58, s58, 1\n  v_writelane_b32 v{vTr}, s56, m0')
    if trace: A('  s_mov_b32 s58, 0')
    wait(0, WK); issue(W); dots(B(0), True)
    A(f'  s_mov_b32 s{sCnt}, {NIT}')
    A('L_kloop:')
    tr()
    for n in range(1, NB + 1):
        wait(n, WK)
        c = issue(n + W, 'K')
        if n & 1:
            dots(B(n), False); mm(B(n-1), B(n))
        else:
            dots(B(n), True)
            if 1 + c + 4 < 8: A(f'  s_nop {8 - (1 + c + 4) - 1}')
            ex()
            y = vY + ((n // 2 - 1) & 1)
            A(f'  v_fma_f32 v{y}, v{vT}, v{vPq}, v{vPqe}')
            A(f'  v_add_f32 v{vDen}, v{vDen}, v{y}')
            A('  s_nop 0')
            A(f'  v_add_f32_dpp v{y}, v{y}, v{y} quad_perm:[1,0,3,2] row_mask:0xf bank_mask:0xf')
            A('  s_nop 1')
            A(f'  v_add_f32_dpp v{y}, v{y}, v{y} quad_perm:[2,3,0,1] row_mask:0xf bank_mask:0xf')
            A('  s_nop 1')
            A(f'  v_add_f32_dpp v{y}, v{y}, v{y} row_half_mirror row_mask:0xf bank_mask:0xf')
            if n % 4 == 0:
                A(f'  v_cvt_pk_bf16_f32 v{vP}, v{vY}, v{vY+1}')
                A(f'  ds_write_b32 v{vLds}, v{vP} offset:{(n // 4 - 1) * 256}')
    A(f'  v_add_u32 v{vLds}, {NP*256}, v{vLds}')
    A(f'  s_sub_u32 s{sCnt}, s{sCnt}, 1')
    A(f'  s_cmp_lg_u32 s{sCnt}, 0')
    A('  s_cbranch_scc1 L_kloop')
    A(f'  v_subrev_u32 v{vLds}, 0x2000, v{vLds}')
    A(f'  ds_read_b32 v{vP}, v{vLds}')
    A(f'  ds_read_b32 v{vP+1}, v{vLds} offset:256')
    for st in ('quad_perm:[1,0,3,2] row_mask:0xf', 'quad_perm:[2,3,0,1] row_mask:0xf', 'row_half_mirror row_mask:0xf',
               'row_mirror row_mask:0xf', 'row_bcast:15 row_mask:0xa', 'row_bcast:31 row_mask:0xc'):
        A(f'  v_add_f32_dpp v{vDen}, v{vDen}, v{vDen} {st} bank_mask:0xf')
        A('  s_nop 1')
    A(f'  v_readlane_b32 s44, v{vDen}, 63')
    A(f'  s_lshl_b32 s45, s{sWave}, 2')
    A(f'  v_mov_b32 v{vT}, s45')
    A(f'  v_mov_b32 v{vDen}, s44')
    A(f'  ds_write_b32 v{vT}, v{vDen} offset:{LDS_DEN}')
    def perms(tile):
        p = vP + ((tile >> 1) & 1)
        for j in range(4):
            A(f'  v_perm_b32 v{vA+j}, v{p}, v{p}, v{vSel + 4 * (tile & 1) + j}')
    A('  s_waitcnt lgkmcnt(0)')
    perms(0)
    A(f'  s_mov_b32 s{sCnt}, {NIT}')
    A('  s_nop 0')
    A('L_vloop:')
    tr()
    for t in range(NB // 2):
        n = 2 * t
        A(f'  v_mfma_f32_16x16x32_bf16 {r4(vAcc0)}, {r4(vA)}, {r4(B(n))}, {r4(vAcc0)}')
        wait(n + 1, WV); issue(n + 1 + W, 'V')
        A(f'  v_mfma_f32_16x16x32_bf16 {r4(vAcc1)}, {r4(vA)}, {r4(B(n+1))}, {r4(vAcc1)}')
        if t & 1:
            A('  s_waitcnt lgkmcnt(1)')
        perms(t + 1)
        if not (t & 1):
            A(f'  ds_read_b32 v{vP + ((t >> 1) & 1)}, v{vLds} offset:{(t // 2 + 2) * 256}')
        if t == NB // 2 - 1:
            A(f'  v_add_u32 v{vLds}, {NP*256}, v{vLds}')
            A(f'  s_sub_u32 s{sCnt}, s{sCnt}, 1')
        wait(n + 2, WV); issue(n + 2 + W, 'V')
    A(f'  s_cmp_lg_u32 s{sCnt}, 0')
    A('  s_cbranch_scc1 L_vloop')
    if trace: A('  s_memrealtime s[60:61]')
    A(f'  v_cmp_gt_u32 vcc, 32, v{vLane}')
    A(f'  v_lshlrev_b32 v{vT}, 4, v{vLane}')
    A(f'  s_lshl_b32 s44, s{sWave}, 13')
    A(f'  v_add_u32 v{vT}, s44, v{vT}')
    for i in range(4):
        A(f'  v_cndmask_b32 v{vAcc0+i}, v{vAcc1+i}, v{vAcc0+i}, vcc')
    A(f'  ds_write_b128 v{vT}, {r4(vAcc0)}')
    A(f'  s_lshl_b32 s44, s{sWave}, 6')
    A(f'  v_add_u32 v{vSq}, s44, v{vLane}          ; d')
    A(f'  v_lshrrev_b32 v{vT}, 3, v{vSq}')
    A(f'  v_lshlrev_b32 v{vT}, 4, v{vT}')
    A(f'  v_bfe_u32 v{vY}, v{vSq}, 2, 1')
    A(f'  v_lshl_add_u32 v{vT}, v{vY}, 8, v{vT}')
    A(f'  v_and_b32 v{vY}, 3, v{vSq}')
    A(f'  v_lshl_add_u32 v{vT}, v{vY}, 2, v{vT}')
    A(f'  v_mov_b32 v{vY}, 0')
    A(f'  s_add_u32 s{sQ}, s12, s43')
    A(f'  s_addc_u32 s{sQ+1}, s13, 0')
    A(f'  s_lshl_b32 s44, s{sHead}, 11')
    A(f'  s_add_u32 s{sOm}, s16, s44')
    A(f'  s_addc_u32 s{sOm+1}, s17, 0')
    A(f'  v_lshlrev_b32 v{vOffA}, 3, v{vSq}        ; d*8')
    A(f'  v_lshlrev_b32 v{vOffB}, 1, v{vSq}        ; d*2')
    A('  s_waitcnt lgkmcnt(0)')
    A('  s_barrier')
    if trace: A('  s_memrealtime s[62:63]')
    A(f'  s_cmp_gt_u32 s{sWave}, 1')
    A('  s_cbranch_scc1 L_end')
    R = vOm
    for w in range(4):
        A(f'  ds_read2st64_b32 {r2(R+2*w)}, v{vT} offset0:{w*32} offset1:{w*32+2}')
    A(f'  ds_read_b128 {r4(vD)}, v{vY} offset:{LDS_DEN}')
    A('  s_waitcnt lgkmcnt(0)')
    A(f'  v_pk_add_f32 {r2(R)}, {r2(R)}, {r2(R+2)}')
    A(f'  v_pk_add_f32 {r2(R+4)}, {r2(R+4)}, {r2(R+6)}')
    A(f'  v_pk_add_f32 {r2(vD)}, {r2(vD)}, {r2(vD+2)}')
    A(f'  v_pk_add_f32 {r2(R)}, {r2(R)}, {r2(R+4)}')
    A(f'  v_add_f32 v{vA+1}, v{vD}, v{vD+1}        ; den')
    A(f'  v_add_f32 v{vA}, v{R}, v{R+1}            ; num')
    if trace: A('  s_memrealtime s[64:65]')
    if xch == 'swap':
        A(f'  v_mov_b32 v{vA+3}, v{vA+1}')
        A(f'  v_mov_b32 v{vA+2}, v{vA}')
        A(f'  buffer_atomic_swap_x2 {r2(vA+2)}, v{vOffA}, s[{sOm}:{sOm+3}], 0 offen sc0 sc1')
        A('  s_waitcnt vmcnt(0)')
        A(f'  v_cmp_ne_u32 vcc, -1, v{vA+3}')
        A(f'  v_pk_add_f32 {r2(vA)}, {r2(vA)}, {r2(vA+2)}')
        A('  s_and_b64 exec, exec, vcc')
        A('  s_cbranch_execz ' + ('L_fin' if stamp else 'L_end'))
    elif xch == 'none':
        pass
    A(f'  v_add_f32 v{vA+1}, 0x{f2u(1e-6):08x}, v{vA+1}')
    A(f'  v_rcp_f32 v{vA+1}, v{vA+1}')
    A('  s_nop 0')
    A(f'  v_mul_f32 v{vA}, v{vA}, v{vA+1}')
    A(f'  v_cvt_pk_bf16_f32 v{vA}, v{vA}, v{vA}')
    A(f'  buffer_store_short v{vA}, v{vOffB}, s[{sQ}:{sQ+3}], 0 offen')
    if stamp:
        A('L_fin:')
        A('  s_mov_b64 exec, -1')
        A(f'  s_cmp_lg_u32 s{sWave}, 0')
        A('  s_cbranch_scc1 L_end')
        A('  s_memrealtime s[52:53]')
        A('  s_getreg_b32 s54, hwreg(HW_REG_XCC_ID)')
        A('  s_getreg_b32 s55, hwreg(HW_REG_HW_ID)')
        A('  s_waitcnt lgkmcnt(0)')
        if trace:
            A(f'  v_writelane_b32 v{vTr}, s60, 32\n  v_writelane_b32 v{vTr}, s62, 33\n  v_writelane_b32 v{vTr}, s64, 34\n  v_writelane_b32 v{vTr}, s52, 35')
            A(f'  s_lshl_b32 s45, s2, 8\n  s_add_u32 s45, s45, 0x2000000\n  v_lshl_add_u32 v11, v0, 2, s45\n  global_store_dword v11, v{vTr}, s[16:17]')
        A('  s_lshl_b32 s44, s2, 5')
        A('  s_add_u32 s44, s44, 0x1000000')
        A('  v_mov_b32 v12, s50\n  v_mov_b32 v13, s51\n  v_mov_b32 v14, s52\n  v_mov_b32 v15, s53')
        A('  v_mov_b32 v16, s54\n  v_mov_b32 v17, s55\n  v_mov_b32 v18, s44')
        A('  s_mov_b64 exec, 1')
        A('  global_store_dwordx4 v18, v[12:15], s[16:17]')
        A('  global_store_dwordx2 v18, v[16:17], s[16:17] offset:16')
    A('L_end:')
    A('  s_endpgm')
    A('L_tov:                                       ; the issue side moves on from K to V')
    A(f'  s_mov_b32 s{sS}, s{sVb}')
    A(f'  s_mov_b32 s{sS+1}, s{sVb+1}')
    A(f'  s_mov_b32 s{sOff}, 0')
    A(f'  v_mov_b32 v{vOffA}, v{vVA}')
    A(f'  v_mov_b32 v{vOffB}, v{vVB}')
    A('  s_branch L_tov_back')
    if xch == 'swap':
        A('L_helper:                                    ; wave 4: prepares the exchange slots of this head')
        A(f'  v_mov_b32 v2, s{sHead}')
        if hv == 4:
            A(f'  v_lshlrev_b32 v2, 11, v2\n  v_add_u32 v2, 0x400, v2')
        if hv == 0: A('  s_endpgm')
        A(f'  s_cmp_lg_u32 s{sSide}, 0')
        A('  s_cbranch_scc1 L_poll' if hv >= 3 else '  s_cbranch_scc1 L_end')
        A(f'  s_lshl_b32 s44, s{sHead}, 11')
        A('  v_lshl_add_u32 v1, v0, 4, s44')
        A('  v_mov_b32 v4, -1\n  v_mov_b32 v5, -1\n  v_mov_b32 v6, -1\n  v_mov_b32 v7, -1')
        A('  s_waitcnt lgkmcnt(0)')
        A('  global_store_dwordx4 v1, v[4:7], s[16:17] sc0 sc1')
        A('  s_mov_b64 exec, 1')
        A('  s_waitcnt vmcnt(0)')
        if hv >= 2: A('  global_store_byte v2, v4, s[%s] sc0 sc1' % ('16:17' if hv == 4 else '14:15'))
        A('  s_endpgm')
        A('L_poll:')
        A('  s_mov_b64 exec, 1')
        A('  s_waitcnt lgkmcnt(0)')
        A('L_poll1:')
        A('  s_sleep 32')
        A('  global_load_ubyte v3, v2, s[%s] sc0 sc1' % ('16:17' if hv == 4 else '14:15'))
        A('  s_waitcnt vmcnt(0)')
        A('  v_cmp_eq_u32 vcc, 0xff, v3')
        A('  s_nop 4')
        A('  s_cbranch_vccz L_poll1')
        A('  s_endpgm')
    A('.section .rodata,"a"')
    A('.p2align 6')
    A(f'.amdhsa_kernel {name}_kernel')
    A(f'  .amdhsa_next_free_vgpr {nvgpr}')
    A('  .amdhsa_next_free_sgpr 72')
    A(f'  .amdhsa_accum_offset {(nvgpr+3)//4*4}')
    A('  .amdhsa_group_segment_fixed_size 0')
    A('  .amdhsa_kernarg_size 56')
    A('  .amdhsa_user_sgpr_count 2')
    A('  .amdhsa_user_sgpr_kernarg_segment_ptr 1')
    A('  .amdhsa_system_sgpr_workgroup_id_x 1')
    A('.end_amdhsa_kernel')
    return '\n'.join(L) + '\n'

def build(specs, prefix, g=None):
    import subprocess, json
    files = []
    for nm, kw in specs.items():
        f = f'var/{prefix}{nm}.s'
        open('code/' + f, 'w').write((g or gen)(**kw)); files.append(f)
    a = subprocess.check_output(['python3', 'bench/mk.py'] + files, cwd='code').decode()
    open('args.txt', 'w').write(a)
    print(json.dumps(["bench/bench", "var/args.txt"] + [x.split(':')[0] for x in a.split()]))
    print(json.dumps(files))

if __name__ == '__main__':
    ap = argparse.ArgumentParser()
    ap.add_argument('-o', default='/dev/stdout')
    ap.add_argument('--wk', default='5')
    ap.add_argument('--wv', default='5')
    ap.add_argument('--nb', type=int, default=8)
    ap.add_argument('--split', type=int, default=16)
    ap.add_argument('--pol', default='nt')
    ap.add_argument('--xch', default='swap')
    ap.add_argument('--stamp', action='store_true')
    ap.add_argument('--trace', action='store_true')
    a = ap.parse_args()
    open(a.o, 'w').write(gen(tuple(map(int, a.wk.split(','))), tuple(map(int, a.wv.split(','))), a.nb, a.pol, a.stamp, a.trace, a.split, a.xch))
```

```python
import sys, math, struct, subprocess, re

def f2u(x):
    return struct.unpack('<I', struct.pack('<f', x))[0]

def gen(LO='55555555', HI='56565666', KLO='55555556', KHI=None, W0=6, thr=4, look=4, chk=8, pre=6, hop=0, hopstart='L_pass', worder=1,
        stamp=False, span=False, force=0, fbo=0, noref=0, half=0, noswap=0, lead=None, lastfar=0, eager=0, rotk=0, I2=16, SPLIT=15, name='standalone__linear_kernel_rfa__decode'):
    L = []
    A = L.append
    NWG, NB, NIT, D = 256, 8, 16, 7
    WIN = {'K': (KLO or LO, KHI or HI), 'V': (LO, HI)}
    Mu, Mt = 0x800, 0x400
    tmask = sum(1 << b for b in range(14, 20) if b not in (I2, SPLIT))
    scale = 128.0 ** -0.25
    c_sq, c_e, c_m = -0.5 * scale, scale * math.log2(math.e), 8.0 ** -0.5
    LW = 8192 + 256
    LDS_DEN = 4 * LW
    lds_bytes = LDS_DEN + 16
    WS_PACE, WS_RANK, WS_STEP = 0x20000, 0x40000, 0x1100
    BOSS = 7
    vLane, vSq, vT, vDen, vCsq, vPq, vPqe, vLds = range(8)
    vOff, vOm, vSel, vC, vA, vAcc0, vAcc1, vP, vY = 8, 12, 20, 28, 32, 36, 40, 44, 46
    vVo, vPace, vTa = 48, 49, 50
    vOld, vSlot, vRed, vWr, vPadr, vZero, vF0, vKo = range(52, 60)
    vD, vBuf = 60, 68
    vBase = vOff + 1
    nvgpr = vBuf + NB * 4
    vQ, vPre = vA, vOff + 2
    def B(n): return vBuf + (n % NB) * 4
    def r4(b): return f'v[{b}:{b+3}]'
    def r2(b): return f'v[{b}:{b+1}]'
    sS, sVb, sQ, sOm, sWs = 20, 24, 28, 32, 44
    sRef, sAt, sTgt, sBoss = 18, 19, 26, 27
    sOff, sCnt, sHead, sSide, sWave, sCe, sKV, sQO = range(36, 44)
    sIt, sInv, sC0, sRk, sGo = range(48, 53)
    sLd, sIx, sLf = (53, 54, 55) if lead else (53, sIt, 55)
    sChk = 56
    sT0 = 58
    def C(ins, c=''): A(f'  {ins:<72}; {c}' if c else f'  {ins}')

    A(f'; @launch grid=({NWG},1,1) block=({320 if hop else 256},1,1) lds={lds_bytes}')
    A('.amdgcn_target "amdgcn-amd-amdhsa--gfx950"')
    A('.text')
    A(f'.globl {name}_kernel')
    A('.p2align 8')
    A(f'.type {name}_kernel,@function')
    A(f'{name}_kernel:')
    C('s_load_dwordx8 s[4:11], s[0:1], 0', 'q k v omega')
    C('s_load_dwordx4 s[12:15], s[0:1], 32', 'out debug')
    C('s_load_dwordx2 s[16:17], s[0:1], 48', 'ws')
    C(f'v_lshrrev_b32 v{vT}, 6, v0', 'wave')
    C(f's_cmp_ge_u32 s2, {NWG}')
    C('s_cbranch_scc1 L_end')
    if stamp or span: C(f's_memrealtime s[{sT0}:{sT0+1}]')
    C(f'v_readfirstlane_b32 s{sWave}, v{vT}')
    C(f'v_lshlrev_b32 v{vSlot}, 3, v0', 'exchange slot of output element d = thread id (waves 2,3: out of range)')
    C(f'v_and_b32 v{vLane}, 63, v0', 'lane')
    if hop:
        C(f's_cmp_eq_u32 s{sWave}, 4')
        C('s_cbranch_scc1 L_warm')
    C(f's_lshr_b32 s{sHead}, s2, 1')
    C(f's_and_b32 s{sSide}, s2, 1')
    C(f'v_bfrev_b32 v{vVo}, v{vT}')
    C(f'v_lshrrev_b32 v{vVo}, 22, v{vVo}', 'wave bits -> address bits 9,8')
    C(f'v_lshrrev_b32 v{vSq}, 4, v{vLane}')
    C(f'v_lshlrev_b32 v{vSq}, 6, v{vSq}', 'slab*64')
    C(f'v_and_b32 v{vDen}, 3, v{vLane}')
    C(f'v_bfe_u32 v{vY}, v{vLane}, 2, 2')
    C(f'v_lshl_or_b32 v{vPq}, v{vDen}, 4, v{vSq}', 'byte in a k / q row: ((l&3) + 4*(l>>4))*16')
    C(f'v_or_b32 v{vKo}, v{vPq}, v{vVo}')
    C(f'v_lshl_or_b32 v{vKo}, v{vY}, 12, v{vKo}', 'k row (l>>2)&3 -> address bits 12,13')
    def offs(src):
        C(f'v_mov_b32 v{vOff}, v{src}')
    offs(vKo)
    C(f'v_lshl_or_b32 v{vPqe}, v{vY}, 4, v{vSq}')
    C(f'v_lshl_or_b32 v{vPqe}, v{vDen}, 8, v{vPqe}', 'omega row l&3 (+4), byte (((l>>2)&3) + 4*(l>>4))*16')
    def sbase():
        C(f's_lshl_b32 s{sKV}, s{sHead}, 20')
        C(f's_lshl_b32 s3, s{sSide}, {SPLIT}')
        C(f's_sub_u32 s{sS+2}, 0x100000, s3', 'bytes left in this head')
        C(f's_add_u32 s{sKV}, s{sKV}, s3', 'byte offset of this half in k / v')
        C(f's_mul_i32 s{sOff}, s{sSide}, {hex(tmask)}' if rotk else f's_mov_b32 s{sOff}, 0')
    sbase()
    C(f's_lshl_b32 s{sQO}, s{sHead}, 8', 'byte offset in q / out')
    C(f's_lshl_b32 s3, s{sHead}, 10', 'byte offset in ws')
    C(f's_mov_b32 s{sS+3}, 0x20000')
    C(f's_mov_b32 s{sQ+2}, 256')
    C(f's_mov_b32 s{sQ+3}, 0x20000')
    C(f's_mov_b32 s{sOm+2}, 2048')
    C(f's_mov_b32 s{sOm+3}, 0x20000')
    C(f's_mov_b32 s{sWs+2}, {512 if half else 1024}')
    C(f's_mov_b32 s{sWs+3}, 0x20000')
    def issue(n, tov=None):
        o = (Mu if n & 1 else 0) + (Mt if n & 2 else 0)
        C(f'buffer_load_dwordx4 {r4(B(n))}, v{vOff}, s[{sS}:{sS+3}], s{sOff} offen' + (f' offset:{o}' if o else '') + ' nt')
        if n % 8 == 3:
            C(f's_bitset1_b32 s{sOff}, {I2}')
        if n % 8 == 7:
            C(f's_or_b32 s{sOff}, s{sOff}, {hex(~tmask & 0xffffffff)}')
            C(f's_add_u32 s{sOff}, s{sOff}, 1')
            C(f's_and_b32 s{sOff}, s{sOff}, {hex(tmask)}', 'next trip')
            if tov is not None:
                C(f's_cmp_eq_u32 s{sCnt}, 2')
                C(f's_cbranch_scc1 L_tov{tov}')
                A(f'L_tov{tov}_back:')
    C('s_waitcnt lgkmcnt(0)')
    C(f's_add_u32 s{sWs}, s16, s3')
    C(f's_addc_u32 s{sWs+1}, s17, 0')
    C(f'buffer_load_dword v{vOld}, v{vSlot}, s[{sWs}:{sWs+3}], 0 offen offset:4 sc0 sc1', 'stale phase bits')
    C(f's_add_u32 s{sS}, s6, s{sKV}')
    C(f's_addc_u32 s{sS+1}, s7, 0')
    issue(0)
    C(f's_mov_b32 s{sOm}, s10')
    C(f's_mov_b32 s{sOm+1}, s11')
    C(f'buffer_load_dwordx4 {r4(vOm)}, v{vPqe}, s[{sOm}:{sOm+3}], 0 offen')
    C(f'buffer_load_dwordx4 {r4(vOm+4)}, v{vPqe}, s[{sOm}:{sOm+3}], 0 offen offset:1024')
    C(f's_add_u32 s{sQ}, s4, s{sQO}')
    C(f's_addc_u32 s{sQ+1}, s5, 0')
    C(f'buffer_load_dwordx4 {r4(vQ)}, v{vPq}, s[{sQ}:{sQ+3}], 0 offen')
    for n in range(1, W0): issue(n)
    C(f's_add_u32 s{sVb}, s8, s{sKV}')
    C(f's_addc_u32 s{sVb+1}, s9, 0')
    C(f's_add_u32 s{sQ}, s12, s{sQO}', 'the q descriptor becomes the out descriptor')
    C(f's_addc_u32 s{sQ+1}, s13, 0')
    C(f's_lshl_b32 s{sBoss}, s2, 2')
    C(f's_add_u32 s{sBoss}, s{sBoss}, s{sWave}', 'global wave number')
    C(f's_and_b32 s{sRef}, s{sBoss}, 0x3e3')
    if noref: C(f's_mov_b32 s{sRef}, 0')
    C(f's_cmp_lg_u32 s{sRef}, 2')
    C('s_cbranch_scc1 L_noref')
    C(f'v_mul_u32_u24 v{vBase}, {hex(WS_STEP)}, v{vLane}')
    C(f'v_add_u32 v{vBase}, {hex(WS_RANK)}, v{vBase}')
    C(f's_mov_b32 s{sRk}, 0')
    C(f's_mov_b32 s{sGo}, 0')
    if lead:
        C(f's_cmp_eq_u32 s{sSide}, {lead[0]}')
        C(f's_cselect_b32 s{sLd}, {lead[1]}, -1')
    C('s_mov_b32 exec_hi, 0')
    C(f'global_load_dword v{vBase}, v{vBase}, s[16:17] sc0 sc1', 'what the arrival counters of the 32 trips hold on entry')
    C('s_mov_b64 exec, -1')
    A('L_noref:')
    C('s_getreg_b32 s3, hwreg(HW_REG_XCC_ID, 0, 3)')
    C(f's_mul_i32 s3, s3, {hex(WS_STEP)}')
    C(f's_add_u32 s3, s3, {hex(WS_PACE)}')
    C(f'v_mov_b32 v{vPadr}, s3', 'progress word of this die')
    C(f's_mov_b32 s{sIt}, 0')
    C(f's_mov_b32 s{sInv}, 1')
    C(f's_mov_b32 s{sC0}, 0')
    if lastfar:
        C(f's_cmp_eq_u32 s{sSide}, {lead[0]}')
        C(f's_cselect_b32 s{sLf}, 0, {lastfar + 1}')
    C(f's_lshr_b32 s{sTgt}, s{sHead}, 2')
    C(f's_and_b32 s{sTgt}, s{sTgt}, {look-1}')
    C(f's_add_u32 s{sTgt}, s{sTgt}, {NIT-look}', 'K trip after which waves 0,1 look at flag 0')
    C(f's_cmp_lt_u32 s{sWave}, 2')
    C(f's_cselect_b32 s{sTgt}, s{sTgt}, -1')
    C(f's_cselect_b32 s{sChk}, {chk}, -1', 'V trip after which they fetch flag 1')
    C(f'v_mov_b32 v{vZero}, 0')
    C(f'v_mov_b32 v{vF0}, 0')
    C(f'v_lshrrev_b32 v{vRed}, 6, v{vSlot}', 'final reduce: d -> (d>>3)*16 + ((d>>2)&1)*256 + (d&3)*4')
    C(f'v_lshlrev_b32 v{vRed}, 4, v{vRed}')
    C(f'v_and_b32 v{vY}, 1, v{vY}')
    C(f'v_lshl_add_u32 v{vRed}, v{vY}, 8, v{vRed}')
    C(f'v_lshl_add_u32 v{vRed}, v{vDen}, 2, v{vRed}')
    C(f's_mul_i32 s3, s{sWave}, {LW}')
    C(f'v_lshl_add_u32 v{vWr}, v{vLane}, 4, s3')
    C(f'v_lshl_add_u32 v{vLds}, v{vLane}, 2, s3')
    C(f'v_and_b32 v{vY}, 15, v{vLane}')
    C(f'v_lshl_or_b32 v{vVo}, v{vY}, 4, v{vVo}')
    C(f'v_lshl_or_b32 v{vVo}, v{vSq}, 6, v{vVo}', 'v: byte (l&15)*16 of row l>>4 -> address bits 12,13')
    C(f'v_mov_b32 v{vCsq}, 0x{f2u(c_sq):08x}', '-0.5 * D^-0.25')
    C(f's_mov_b32 s{sCe}, 0x{f2u(c_e):08x}', 'D^-0.25 * log2(e)')
    C(f'v_mov_b32 v{vDen}, 0')
    for i in range(4):
        C(f'v_mov_b32 v{vAcc0+i}, 0')
        C(f'v_mov_b32 v{vAcc1+i}, 0')
    C(f'v_and_b32 v{vY}, 1, v{vLane}')
    C(f'v_cmp_eq_u32 vcc, 1, v{vY}')
    C(f'v_mov_b32 v{vC}, 0x0c0c0100')
    C(f'v_mov_b32 v{vC+1}, 0x01000c0c')
    C(f'v_cndmask_b32 v{vC}, v{vC}, v{vC+1}, vcc', 'even tile: low half of the packed pair')
    C(f'v_mov_b32 v{vC+1}, 0x0c0c0302')
    C(f'v_mov_b32 v{vC+2}, 0x03020c0c')
    C(f'v_cndmask_b32 v{vC+1}, v{vC+1}, v{vC+2}, vcc', 'odd tile: high half')
    C(f'v_mov_b32 v{vC+2}, 0x0c0c0c0c')
    C(f'v_bfe_u32 v{vY}, v{vLane}, 1, 2')
    for j in range(4):
        C(f'v_cmp_eq_u32 vcc, {j}, v{vY}')
        C('s_nop 1')
        C(f'v_cndmask_b32 v{vSel+j}, v{vC+2}, v{vC}, vcc')
        C(f'v_cndmask_b32 v{vSel+4+j}, v{vC+2}, v{vC+1}, vcc')
    def dot(k, i): C(f'v_dot2_f32_bf16 v{vSq}, v{k+i}, v{k+i}, ' + ('0' if i == 0 else f'v{vSq}'))
    def sgemm(): C(f'v_mfma_f32_16x16x4_f32 {r4(vC)}, v{vSq}, v{vCsq}, 0')
    def xdl(k, h): C(f'v_mfma_f32_16x16x32_bf16 {r4(vD+4*h)}, {r4(k)}, {r4(vOm+4*h)}, {r4(vC)}')
    def comb(u, h, i):
        b = 2 * u + h
        r = [x for x in range(4) if x != b][i]
        src1 = vD + 4 * h + b if i == 0 else vTa + h
        dst, mask = (vT, 1 << b) if i == 2 else (vTa + h, 15)
        C(f'v_add_f32_dpp v{dst}, v{vD + 4*h + r}, v{src1} row_ror:{(4 * (b - r)) % 16} row_mask:0xf bank_mask:{hex(mask)}')
    def nop(): C('s_nop 0')
    RED = ('quad_perm:[1,0,3,2]', 'quad_perm:[2,3,0,1]', 'row_half_mirror')
    def red(y, i): C(f'v_add_f32_dpp v{y}, v{y}, v{y} {RED[i]} row_mask:0xf bank_mask:0xf')
    C(f's_waitcnt vmcnt({W0 + 2})')
    issue(W0)
    C(f's_waitcnt vmcnt({W0})')
    for i in range(4): dot(vQ, i)
    C('s_mov_b64 vcc, -1', 'vcc != 0: wide window')
    C('s_nop 1')
    sgemm(); xdl(vQ, 0); xdl(vQ, 1)
    for n in range(W0 + 1, D + 1):
        C(f's_waitcnt vmcnt({W0 - 1})')
        issue(n)
    C('s_nop 7')
    comb(0, 0, 0); comb(0, 1, 0); nop(); comb(0, 0, 1); comb(0, 1, 1); nop(); comb(0, 0, 2)
    C('s_nop 1')
    comb(0, 1, 2)
    C('s_nop 1')
    C(f'v_mov_b32_dpp v{vT}, v{vT} row_ror:8 row_mask:0xf bank_mask:0xc')
    C(f'v_mul_f32 v{vT}, s{sCe}, v{vT}')
    C(f'v_exp_f32 v{vT}, v{vT}')
    C(f'v_mov_b32 v{vY}, 0x{f2u(1e-6):08x}')
    C(f'v_fmac_f32 v{vY}, 0x{f2u(c_m):08x}, v{vT}', 'phi_q[m], m = l&7')
    C(f'v_mul_f32 v{vPq}, 0x{f2u(c_m):08x}, v{vY}')
    C(f'v_mul_f32 v{vPqe}, 0x{f2u(1e-6):08x}, v{vY}')
    nlab = [0]
    def wait(n, ph, far):
        j = n - 1
        cnt = lambda w: w - 1 + (1 if j < w else 0)
        if far:
            C(f's_waitcnt vmcnt({cnt(7)})'); return
        lo, hi = (int(x[j]) for x in WIN[ph])
        assert lo <= hi <= 6
        if lo != hi:
            nlab[0] += 1
            if worder == 0: C(f's_waitcnt vmcnt({cnt(hi)})')
            C(f's_cbranch_vccnz L_w{nlab[0]}')
            C(f's_waitcnt vmcnt({cnt(lo)})')
            A(f'L_w{nlab[0]}:')
            if worder == 1: C(f's_waitcnt vmcnt({cnt(hi)})')
        else:
            C(f's_waitcnt vmcnt({cnt(lo)})')
    def pload(): C(f'global_load_dword v{vPace}, v{vPadr}, s[16:17] nt', 'progress of the reference wave')
    def ptop(ph):
        C(f's_cmp_eq_u32 s{sRef}, 2')
        C(f's_cbranch_scc1 L_pub{ph}')
        pload()
        A(f'L_pub{ph}_back:')
    def pend(ph):
        C(f'v_readfirstlane_b32 s3, v{vPace}')
        C(f's_add_u32 s{sIt}, s{sIt}, 1')
        C(f's_cmp_lg_u32 s{sInv}, 0')
        C(f's_cbranch_scc1 L_inv{ph}')
        A(f'L_inv{ph}_back:')
        C(f's_cmp_ge_u32 s3, s{sIt}', 'the reference began this trip first: wide window next')
        C('s_cselect_b64 vcc, -1, 0')
    def far(lbl):
        if fbo:
            C(f's_mul_i32 s3, s{sBoss}, s{sCnt}'); C('s_and_b32 s3, s3, 2'); C(f's_cmp_eq_u32 s{sRef}, 2'); C('s_cselect_b32 s3, 0, s3'); C(f's_add_u32 s3, s3, s{sIt}')
        C(f's_cmp_gt_u32 s3, s{sIt}', 'a whole trip behind: widest window')
        C(f's_cbranch_scc1 {lbl}')
    A('L_pass:')
    for i in range(4): dot(B(0), i)
    C(f's_mov_b32 s{sCnt}, {NIT}')
    C('s_nop 1')
    sgemm(); xdl(B(0), 0); xdl(B(0), 1)
    def kbody(fr):
        for n in range(1, NB + 1):
            wait(n, 'K', fr); issue(n + D, '2' if fr else '')
            k = B(n)
            if n & 1:
                y = vY + (((n - 3) // 2) & 1)
                dot(k, 0); red(y, 0); dot(k, 1); dot(k, 2); red(y, 1); dot(k, 3)
                comb(0, 0, 0); red(y, 2); comb(0, 1, 0)
                sgemm()
                comb(0, 0, 1); comb(0, 1, 1)
                if n % 4 == 1: C(f'v_cvt_pk_bf16_f32 v{vP}, v{vY}, v{vY+1}')
                else: nop()
                comb(0, 0, 2); xdl(k, 0)
                if n % 4 == 1: C(f'ds_write_b32 v{vLds}, v{vP} offset:{(n // 4) * 256}')
                else: nop()
                comb(0, 1, 2); xdl(k, 1)
            else:
                y = vY + (((n - 2) // 2) & 1)
                for i in range(4): dot(k, i)
                nop()
                comb(1, 0, 0); comb(1, 1, 0)
                sgemm()
                comb(1, 0, 1); comb(1, 1, 1); nop()
                comb(1, 0, 2); xdl(k, 0); nop()
                comb(1, 1, 2)
                C(f'v_mul_f32 v{vT}, s{sCe}, v{vT}')
                C(f'v_exp_f32 v{vT}, v{vT}')
                xdl(k, 1)
                C(f'v_fma_f32 v{y}, v{vT}, v{vPq}, v{vPqe}', 'phi_q[m] * phi_k[key,m]')
                C(f'v_add_f32 v{vDen}, v{vDen}, v{y}')
    A('L_kloop:')
    ptop('K'); kbody(False)
    A('L_kend:')
    C(f'v_add_u32 v{vLds}, 512, v{vLds}')
    pend('K')
    C(f's_sub_u32 s{sCnt}, s{sCnt}, 1')
    C(f's_cmp_eq_u32 s{sCnt}, s{sTgt}')
    C('s_cbranch_scc1 L_look')
    far('L_kfar')
    C(f's_cmp_lg_u32 s{sCnt}, 0')
    C('s_cbranch_scc1 L_kloop')
    A('L_kdone:')
    steps = ('quad_perm:[1,0,3,2] row_mask:0xf', 'quad_perm:[2,3,0,1] row_mask:0xf', 'row_half_mirror row_mask:0xf',
             'row_mirror row_mask:0xf', 'row_bcast:15 row_mask:0xa', 'row_bcast:31 row_mask:0xc')
    fill = [[lambda: red(vY+1, 0), lambda: C(f'v_subrev_u32 v{vLds}, 0x1f00, v{vLds}')],
            [lambda: red(vY+1, 1), lambda: C(f'ds_read_b32 v{vP}, v{vLds}')],
            [lambda: red(vY+1, 2), lambda: C(f'ds_read_b32 v{vP+1}, v{vLds} offset:256')],
            [lambda: C(f'v_cvt_pk_bf16_f32 v{vSq}, v{vY}, v{vY+1}'), lambda: C(f'ds_write_b32 v{vLds}, v{vSq} offset:{0x1f00}')],
            [lambda: C(f's_lshl_b32 s3, s{sWave}, 2'), lambda: C(f'v_mov_b32 v{vY}, s3')],
            [lambda: C(f's_mov_b32 s{sCnt}, {NIT}')]]
    for i, st in enumerate(steps):
        src = vDen if i == 0 else vT
        C(f'v_add_f32_dpp v{vT}, v{src}, v{src} {st} bank_mask:0xf')
        for f in fill[i]: f()
    C(f'v_readlane_b32 s3, v{vT}, 63')
    def perms(tile):
        p = vP + ((tile >> 1) & 1)
        for j in range(4):
            C(f'v_perm_b32 v{vA+j}, v{p}, v{p}, v{vSel + 4 * (tile & 1) + j}')
    C('s_waitcnt lgkmcnt(0)')
    perms(0)
    C('s_bitset0_b32 s3, 31')
    C(f'v_lshl_or_b32 v{vT}, v{vF0}, 31, s3', 'sign bit set: the stale phase bits cannot be trusted')
    C(f'ds_write_b32 v{vY}, v{vT} offset:{LDS_DEN}')
    C(f's_cmp_eq_u32 s{sBoss}, {BOSS}')
    C('s_cbranch_scc1 L_flag1')
    def mm(acc, n): C(f'v_mfma_f32_16x16x32_bf16 {r4(acc)}, {r4(vA)}, {r4(B(n))}, {r4(acc)}')
    def vbody(fr):
        for t in range(NB // 2):
            n = 2 * t
            mm(vAcc0, n)
            wait(n + 1, 'V', fr); issue(n + 1 + D)
            mm(vAcc1, n + 1)
            if t & 1: C('s_waitcnt lgkmcnt(1)')
            perms(t + 1)
            if not (t & 1):
                C(f'ds_read_b32 v{vP + ((t >> 1) & 1)}, v{vLds} offset:{(t // 2 + 2) * 256}')
            if t == NB // 2 - 1:
                C(f'v_add_u32 v{vLds}, 512, v{vLds}')
                C(f's_sub_u32 s{sCnt}, s{sCnt}, 1')
            wait(n + 2, 'V', fr); issue(n + 2 + D)
    A('L_vloop:')
    ptop('V'); vbody(False)
    A('L_vend:')
    pend('V')
    C(f's_cmp_eq_u32 s{sCnt}, s{sChk}')
    C('s_cbranch_scc1 L_chk')
    far('L_vfar')
    if lastfar:
        C(f's_cmp_le_u32 s{sCnt}, s{sLf}')
        C('s_cbranch_scc1 L_vfar')
    C(f's_cmp_lg_u32 s{sCnt}, 1')
    C('s_cbranch_scc1 L_vloop')
    A('L_vdone:')
    ex_ = [0]
    def lwait(n):
        C(f's_waitcnt vmcnt({NB - 1 - n + ex_[0]})')
        if n == pre:
            C(f'buffer_load_dwordx2 {r2(vPre)}, v{vSlot}, s[{sWs}:{sWs+3}], 0 offen sc0 sc1', 'has the partner deposited already?')
            ex_[0] = 1
            C('s_cbranch_scc1 L_pubL')
            A('L_pubL_back:')
    C(f's_cmp_eq_u32 s{sRef}, 2')
    for t in range(NB // 2):
        n = 2 * t
        mm(vAcc0, n)
        if t == NB // 2 - 1:
            C('s_nop 6')
            C('s_mov_b32 exec_hi, 0')
            C(f'ds_write_b128 v{vWr}, {r4(vAcc0)}', 'rows 0..7 live in lanes 0..31')
            C('s_mov_b64 exec, -1')
        lwait(n + 1)
        mm(vAcc1, n + 1)
        if t < NB // 2 - 1:
            if t == 1: C('s_waitcnt lgkmcnt(0)')
            perms(t + 1)
            lwait(n + 2)
            if n + 2 != pre: nop()
    C(f'v_not_b32 v{vY}, v{vOld}')
    C(f'v_and_b32 v{vY}, 0x80000000, v{vY}', 'sign this launch deposits = opposite of the stale one')
    C('s_nop 4')
    C('s_mov_b32 exec_lo, 0')
    C(f'ds_write_b128 v{vWr}, {r4(vAcc1)}', 'rows 8..15 live in lanes 32..63')
    C('s_mov_b64 exec, -1')
    if pre == 8:
        C(f'buffer_load_dwordx2 {r2(vPre)}, v{vSlot}, s[{sWs}:{sWs+3}], 0 offen sc0 sc1', 'has the partner deposited already?')
        C('s_cbranch_scc1 L_pubL')
        A('L_pubL_back:')
    C(f's_cmp_gt_u32 s{sWave}, {0 if half else 1}')
    C('s_waitcnt lgkmcnt(0)')
    C('s_barrier')
    R = vD
    C(f'ds_read_b128 {r4(vC)}, v{vZero} offset:{LDS_DEN}')
    C('s_cbranch_scc1 L_idle')
    for w in range(4):
        C(f'ds_read2st64_b32 {r2(R+2*w)}, v{vRed} offset0:{w*33} offset1:{w*33+2}')
    C(f'v_lshrrev_b32 v{vWr}, 2, v{vSlot}', 'd*2')
    C('s_waitcnt lgkmcnt(4)')
    C(f'v_or_b32 v{vT}, v{vC}, v{vC+1}')
    C(f'v_pk_add_f32 {r2(vC)}, {r2(vC)}, {r2(vC+2)}')
    C(f'v_readfirstlane_b32 s3, v{vT}')
    C(f'v_add_f32 v{vA+1}, v{vC}, v{vC+1}', 'den of this half')
    C('s_cmp_lt_i32 s3, 0')
    C('s_cbranch_scc1 L_again')
    if eager:
        C(f'v_or_b32 v{vA+3}, v{vA+1}, v{vY}')
        A('L_chk2:')
        C(f's_cmp_eq_u32 s{sAt}, 0', 'no deposit before flag 1')
        C('s_cbranch_scc1 L_poll')
        C('s_waitcnt lgkmcnt(0)')
        C(f'v_pk_add_f32 {r2(R)}, {r2(R)}, {r2(R+2)}')
        C(f'v_pk_add_f32 {r2(R+4)}, {r2(R+4)}, {r2(R+6)}')
        C(f'v_pk_add_f32 {r2(R)}, {r2(R)}, {r2(R+4)}')
        C(f'v_add_f32 v{vA+2}, v{R}, v{R+1}', 'num of this half')
        C(f'buffer_atomic_swap_x2 {r2(vA+2)}, v{vSlot}, s[{sWs}:{sWs+3}], 0 offen sc0 sc1')
        C(f'v_add_f32 v{vA}, v{R}, v{R+1}')
        C('s_waitcnt vmcnt(1)')
        C(f'v_xor_b32 v{vPre+1}, v{vPre+1}, v{vY}')
        C(f'v_cmp_gt_i32 vcc, 0, v{vPre+1}', 'lanes whose slot was still stale at the early look')
        C('s_cbranch_vccz L_out')
        C('s_waitcnt vmcnt(0)')
        C(f'v_xor_b32 v{vPre+1}, v{vA+3}, v{vY}', 'sign clear: the partner deposited first')
        C(f'v_mov_b32 v{vPre}, v{vA+2}')
        C(f'v_cmpx_le_i32 vcc, 0, v{vPre+1}')
        C('s_cbranch_execz ' + ('L_fin' if stamp or span else 'L_end'))
    else:
        C('s_waitcnt lgkmcnt(0)')
        C(f'v_pk_add_f32 {r2(R)}, {r2(R)}, {r2(R+2)}')
        C(f'v_pk_add_f32 {r2(R+4)}, {r2(R+4)}, {r2(R+6)}')
        C('s_waitcnt vmcnt(0)')
        C(f'v_xor_b32 v{vPre+1}, v{vPre+1}, v{vY}')
        C(f'v_pk_add_f32 {r2(R)}, {r2(R)}, {r2(R+4)}')
        C(f'v_cmp_gt_i32 vcc, 0, v{vPre+1}', 'lanes whose slot was still stale')
        C(f'v_add_f32 v{vA}, v{R}, v{R+1}', 'num of this half')
        if not noswap: C('s_cbranch_vccnz L_swap')
    A('L_out:')
    C(f'v_pk_add_f32 {r2(vA)}, {r2(vA)}, {r2(vPre)}')
    C(f'v_add_f32 v{vA+1}, 0x{f2u(1e-6):08x}, v{vA+1}')
    C(f'v_rcp_f32 v{vA+1}, v{vA+1}')
    nop()
    C(f'v_mul_f32 v{vA}, v{vA}, v{vA+1}')
    C(f'v_cvt_pk_bf16_f32 v{vA}, v{vA}, v{vA}')
    C(f'buffer_store_short v{vA}, v{vWr}, s[{sQ}:{sQ+3}], 0 offen sc1')
    if stamp or span: C('s_branch L_fin')
    A('L_end:')
    C('s_endpgm')
    if not eager:
        A('L_swap:')
        C(f'v_mov_b32 v{vPre}, v{vA}')
        C(f'v_or_b32 v{vPre+1}, v{vA+1}, v{vY}')
        C(f's_cmp_eq_u32 s{sAt}, 0', 'no deposit before flag 1')
        C('s_cbranch_scc1 L_poll')
        C(f'buffer_atomic_swap_x2 {r2(vPre)}, v{vSlot}, s[{sWs}:{sWs+3}], 0 offen sc0 sc1')
        C('s_waitcnt vmcnt(0)')
        C(f'v_xor_b32 v{vPre+1}, v{vPre+1}, v{vY}', 'sign clear: the partner deposited first')
        C(f'v_cmpx_le_i32 vcc, 0, v{vPre+1}')
        C('s_cbranch_execnz L_out')
        C('s_branch L_fin' if stamp or span else 's_endpgm')
    A('L_idle:                                    ; waves 2,3 are done unless a second pass is needed')
    C('s_waitcnt lgkmcnt(0)')
    C(f'v_or_b32 v{vT}, v{vC}, v{vC+1}')
    nop()
    C(f'v_readfirstlane_b32 s3, v{vT}')
    C('s_cmp_lt_i32 s3, 0')
    C('s_cbranch_scc1 L_again')
    C('s_endpgm')
    A('L_pubL:                                    ; leave no dirty line behind')
    C('s_mov_b64 exec, 1')
    C(f'global_store_dword v{vPadr}, v{vPace}, s[16:17] sc0 sc1')
    C('s_mov_b64 exec, -1')
    C('s_branch L_pubL_back')
    for ph in 'KV':
        A(f'L_pub{ph}:                                    ; reference wave: publish the trip, compare with the other dies')
        C(f's_add_u32 s3, s{sIt}, 1')
        C(f'v_mov_b32 v{vPace}, s3')
        C('s_mov_b64 exec, 1')
        C(f'global_store_dword v{vPadr}, v{vPace}, s[16:17]')
        C('s_mov_b64 exec, -1')
        if ph == 'K':
            C(f's_cmp_eq_u32 s{sIt}, 0')
            C(f's_cbranch_scc1 L_pub{ph}_back')
        if lead:
            C(f's_cmp_eq_u32 s{sIt}, s{sLd}')
            C(f's_cbranch_scc1 L_pub{ph}_back')
            C(f's_cmp_gt_u32 s{sIt}, s{sLd}')
            C(f's_subb_u32 s{sIx}, s{sIt}, 0')
        C(f'v_readlane_b32 s3, v{vBase}, s{sIx}')
        C('s_waitcnt lgkmcnt(0)')
        C(f's_sub_u32 s{sRk}, s{sRk}, s{sGo}', 'how many references began the previous trip earlier')
        C(f's_cmp_ge_u32 s{sRk}, {thr}')
        C('s_cselect_b64 vcc, -1, 0')
        C(f's_mov_b32 s{sGo}, s3')
        C(f's_mul_i32 s3, s{sIx}, {hex(WS_STEP)}')
        C(f's_add_u32 s3, s3, {hex(WS_RANK)}')
        C(f's_mov_b32 s{sRk}, 1')
        C(f's_atomic_add s{sRk}, s[16:17], s3 glc')
        C(f's_branch L_pub{ph}_back')
        A(f'L_inv{ph}:                                    ; until the progress word changes it is not known to be from this launch')
        C(f's_cmp_eq_u32 s{sIt}, 1')
        C(f's_cselect_b32 s{sC0}, s3, s{sC0}')
        C(f's_cmp_eq_u32 s3, s{sC0}')
        C(f's_cselect_b32 s{sInv}, 1, 0')
        C(f's_cbranch_scc0 L_inv{ph}_back')
        C(f's_and_b32 s3, s{sIt}, -2', 'alternate the two windows')
        C(f's_branch L_inv{ph}_back')
    def tov(sfx):
        A(f'L_tov{sfx}:                                     ; the issue side moves on from K to V')
        C(f's_mov_b32 s{sS}, s{sVb}')
        C(f's_mov_b32 s{sS+1}, s{sVb+1}')
        C(f's_mul_i32 s{sOff}, s{sSide}, {hex(tmask)}' if rotk else f's_mov_b32 s{sOff}, 0')
        offs(vVo)
        C(f's_cmp_lg_u32 s{sBoss}, {BOSS}')
        C(f's_cbranch_scc1 L_tov{sfx}_back')
        C(f's_mov_b32 s{sAt}, 1')
        C(f's_atomic_add s{sAt}, s[14:15], 0 glc', 'flag 0: phase bits read from now on are not trusted')
        C(f's_branch L_tov{sfx}_back')
    tov('')
    A('L_flag1:                                   ; flag 0 has landed (lgkmcnt(0) above): deposits may start')
    C(f's_mov_b32 s{sAt}, 1')
    C(f's_atomic_add s{sAt}, s[14:15], 128')
    C(f's_mov_b32 s{sBoss}, -1')
    C('s_branch L_vloop')
    A('L_look:                                    ; the stale phase bits are in registers by now')
    C(f'global_load_dword v{vF0}, v{vZero}, s[14:15] sc0 sc1')
    if force:
        C('s_waitcnt vmcnt(0)')
        C(f's_mul_i32 s3, s{sBoss}, 0x9e3779b1'); C('s_lshr_b32 s3, s3, 29'); C(f's_cmp_lt_u32 s3, {force}')
        C('s_cselect_b32 s3, 1, 0'); C(f'v_or_b32 v{vF0}, s3, v{vF0}')
    C('s_branch L_kloop')
    A('L_chk:')
    C(f's_load_dword s{sAt}, s[14:15], 128')
    C('s_branch L_vloop')
    def vfar():
        A('L_vfar:')
        C(f's_cmp_eq_u32 s{sCnt}, 1')
        C('s_cbranch_scc1 L_vdone')
        pload(); vbody(True)
        C('s_branch L_vend')
    if lastfar: vfar()
    A('L_hopend:')
    A('L_poll:')
    C('s_sleep 8')
    C(f's_atomic_add s{sAt}, s[14:15], 128 glc')
    C('s_waitcnt lgkmcnt(0)')
    C('s_branch L_chk2' if eager else 's_branch L_swap')
    A('L_again:                                   ; started too late to trust the phase bits: do the other half too')
    C('s_waitcnt vmcnt(0) lgkmcnt(0)')
    C('s_barrier')
    C(f's_mov_b32 s{sWs+2}, 0', 'no exchange: the slot reads as a zero deposit')
    C(f'v_mov_b32 v{vOld}, -1')
    C(f's_mul_i32 s3, s{sWave}, {LW}')
    C(f'v_lshl_add_u32 v{vWr}, v{vLane}, 4, s3')
    C(f's_mov_b32 s{sTgt}, -1')
    C(f'v_mov_b32 v{vF0}, 0')
    C(f's_xor_b32 s{sSide}, s{sSide}, 1')
    sbase()
    C(f's_add_u32 s{sS}, s6, s{sKV}')
    C(f's_addc_u32 s{sS+1}, s7, 0')
    C(f's_add_u32 s{sVb}, s8, s{sKV}')
    C(f's_addc_u32 s{sVb+1}, s9, 0')
    offs(vKo)
    C(f'v_subrev_u32 v{vLds}, 0x1f00, v{vLds}')
    for n in range(D + 1): issue(n)
    C(f's_waitcnt vmcnt({D})')
    C('s_branch L_pass')
    A('L_kfar:                                    ; the same trips with 7 loads in flight')
    C(f's_cmp_eq_u32 s{sCnt}, 0')
    C('s_cbranch_scc1 L_kdone')
    pload(); kbody(True)
    C('s_branch L_kend')
    tov('2')
    if not lastfar: vfar()
    if stamp:
        t = sT0
        A('L_fin:')
        for x in (f's_mov_b64 exec, -1', f's_cmp_lg_u32 s{sWave}, 0', 's_cbranch_scc1 L_end', f's_memrealtime s[{t+2}:{t+3}]',
                  f's_getreg_b32 s{t+4}, hwreg(HW_REG_XCC_ID)', f's_getreg_b32 s{t+5}, hwreg(HW_REG_HW_ID)', 's_waitcnt lgkmcnt(0)',
                  's_lshl_b32 s3, s2, 5', 's_add_u32 s3, s3, 0x1000000'): C(x)
        for i in range(6): C(f'v_mov_b32 v{12+i}, s{t+i}')
        for x in ('v_mov_b32 v18, s3', 's_mov_b64 exec, 1', 'global_store_dwordx4 v18, v[12:15], s[16:17]',
                  'global_store_dwordx2 v18, v[16:17], s[16:17] offset:16', 's_endpgm'): C(x)
    if span:
        t = sT0
        A('L_fin:')
        def spin(lbl, lim):
            A(lbl + ':')
            for x in (f's_memrealtime s[{t+2}:{t+3}]', 's_waitcnt lgkmcnt(0)', f's_sub_u32 s{t+2}, s{t+2}, s{t}', f's_cmp_lt_u32 s{t+2}, {lim}', f's_cbranch_scc1 {lbl}'): C(x)
        for x in ('s_mov_b64 exec, -1', f's_memrealtime s[{t+2}:{t+3}]', 's_lshl_b32 s3, s2, 1', f's_add_u32 s3, s3, s{sWave}', 's_lshl_b32 s3, s3, 8',
                  's_add_u32 s3, s3, 0x1000000', 'v_mov_b32 v1, s3', 's_waitcnt lgkmcnt(0)', f'v_mov_b32 v2, s{t+2}', 's_mov_b64 exec, 1',
                  'global_store_dword v1, v2, s[16:17] sc0 sc1', 's_mov_b64 exec, -1', 's_cmp_lg_u32 s3, 0x1000000', 's_cbranch_scc1 L_end'): C(x)
        spin('L_sp1', 9000)
        for x in ('v_lshlrev_b32 v1, 8, v0', 'v_add_u32 v1, 0x1000000, v1', 'v_mov_b32 v3, 0'): C(x)
        for j in range(8):
            for x in ('global_load_dword v2, v1, s[16:17] sc0 sc1', 'v_add_u32 v1, 0x4000, v1', 's_waitcnt vmcnt(0)', f'v_subrev_u32 v2, s{t}, v2', 'v_max_u32 v3, v3, v2'): C(x)
        C(f's_mov_b32 s{t+5}, 0'); C(f's_mov_b32 s{t+4}, 0')
        A('L_sp3:')
        for x in ('s_nop 4', f'v_readlane_b32 s{t+3}, v3, s{t+4}', 's_nop 1', f's_max_u32 s{t+5}, s{t+5}, s{t+3}', f's_add_u32 s{t+4}, s{t+4}, 1',
                  f's_cmp_lt_u32 s{t+4}, 64', 's_cbranch_scc1 L_sp3', f's_sub_u32 s{t+5}, s{t+5}, 3500', f's_mul_i32 s{t+5}, s{t+5}, 20',
                  f's_add_u32 s{t+5}, s{t+5}, 15000', f's_min_u32 s{t+5}, s{t+5}, 60000'): C(x)
        spin('L_sp2', f's{t+5}')
        C('s_endpgm')
    A('.section .rodata,"a"')
    A('.p2align 6')
    A(f'.amdhsa_kernel {name}_kernel')
    A(f'  .amdhsa_next_free_vgpr {nvgpr}')
    A(f'  .amdhsa_next_free_sgpr {64 if stamp or span else 57}')
    A(f'  .amdhsa_accum_offset {(nvgpr+3)//4*4}')
    A('  .amdhsa_group_segment_fixed_size 0')
    A('  .amdhsa_kernarg_size 56')
    A('  .amdhsa_user_sgpr_count 2')
    A('  .amdhsa_user_sgpr_kernarg_segment_ptr 1')
    A('  .amdhsa_system_sgpr_workgroup_id_x 1')
    A('.end_amdhsa_kernel')
    if hop: L = addhops(L, hopstart, hop)
    else: L.remove('L_hopend:')
    return '\n'.join(L) + '\n'

def addhops(lines, start, step):
    open('_h.s', 'w').write('\n'.join(lines).replace('s_cbranch_scc1 L_warm', 's_cbranch_scc1 L_end') + '\n')
    subprocess.check_call(['clang', '-x', 'assembler', '-target', 'amdgcn-amd-amdhsa', '-mcpu=gfx950', '-c', '_h.s', '-o', '_h.o'])
    d = subprocess.check_output(['llvm-objdump', '-d', '--mcpu=gfx950', '_h.o']).decode()
    sizes = [4 * len(m.group(1).split()) for m in re.finditer(r'// [0-9A-F]{12}: ([0-9A-F ]+?)(?: <.*)?$', d, re.M)]
    out = []; k = 0; addr = 0; on = False; n = 0; last = -1; intext = False; prev = ''; partial = False
    for l in lines:
        st = l.strip()
        isins = intext and l.startswith('  ') and not st.startswith('.')
        if st.endswith('_kernel:'): intext = True
        if st.startswith('.section'): intext = False
        if st.startswith(start + ':'): on = True
        if st == 'L_hopend:':
            out += [f'L_h{n}:', '  s_endpgm',
                    'L_warm:                                    ; wave 4: instruction-cache warm-up, jumps over every memory instruction',
                    '  s_mov_b64 exec, 0', '  s_cbranch_execz L_h0', '  s_endpgm']
            on = False
            continue
        if isins:
            ok = not partial and not prev.startswith(('s_waitcnt vmcnt', 's_cbranch', 'v_cmpx')) and not st.startswith(('buffer_load', 's_waitcnt vmcnt'))
            if on and addr // step != last and ok:
                if st == 's_nop 0':
                    out += [f'L_h{n}:', f'  s_cbranch_execz L_h{n+1}']; n += 1
                    last = addr // step; addr += sizes[k]; k += 1; prev = st
                    continue
                if addr % step >= step // 2 or not (0 < n < 6):
                    out += [f'L_h{n}:', f'  s_cbranch_execz L_h{n+1}']; n += 1
                    last = addr // step; addr += 4
            if re.match(r's_mov_b(32|64) exec', st): partial = not st.startswith('s_mov_b64 exec, -1')
            addr += sizes[k]; k += 1; prev = st
        out.append(l)
    assert k == len(sizes), (k, len(sizes))
    return out

def build(specs, prefix):
    from gen2 import build as b
    b(specs, prefix, gen)

if __name__ == '__main__':
    open(sys.argv[1], 'w').write(gen())
```

```python
import sys, math, struct, subprocess, re

def f2u(x):
    return struct.unpack('<I', struct.pack('<f', x))[0]

def gen(LO='55555555', HI='56565666', KLO='55555556', KHI=None, W0=6, thr=4, look=4, chk=8, pre=6, hop=0, hopstart='L_pass', worder=1,
        stamp=False, span=False, force=0, fbo=0, noref=0, half=0, noswap=0, lead=None, lastfar=0, eager=0, rotk=0, delay=None, I2=16, SPLIT=15, name='standalone__linear_kernel_rfa__decode'):
    L = []
    A = L.append
    NWG, NB, NIT, D = 256, 8, 16, 7
    WIN = {'K': (KLO or LO, KHI or HI), 'V': (LO, HI)}
    Mu, Mt = 0x800, 0x400
    tmask = sum(1 << b for b in range(14, 20) if b not in (I2, SPLIT))
    scale = 128.0 ** -0.25
    c_sq, c_e, c_m = -0.5 * scale, scale * math.log2(math.e), 8.0 ** -0.5
    LW = 8192 + 256
    LDS_DEN = 4 * LW
    lds_bytes = LDS_DEN + 16
    WS_PACE, WS_RANK, WS_STEP = 0x20000, 0x40000, 0x1100
    BOSS = 7
    vLane, vSq, vT, vDen, vCsq, vPq, vPqe, vLds = range(8)
    vOff, vOm, vSel, vC, vA, vAcc0, vAcc1, vP, vY = 8, 12, 20, 28, 32, 36, 40, 44, 46
    vVo, vPace, vTa = 48, 49, 50
    vOld, vSlot, vRed, vWr, vPadr, vZero, vF0, vKo = range(52, 60)
    vD, vBuf = 60, 68
    vBase = vOff + 1
    nvgpr = vBuf + NB * 4
    vQ, vPre = vA, vOff + 2
    def B(n): return vBuf + (n % NB) * 4
    def r4(b): return f'v[{b}:{b+3}]'
    def r2(b): return f'v[{b}:{b+1}]'
    sS, sVb, sQ, sOm, sWs = 20, 24, 28, 32, 44
    sRef, sAt, sTgt, sBoss = 18, 19, 26, 27
    sOff, sCnt, sHead, sSide, sWave, sCe, sKV, sQO = range(36, 44)
    sIt, sInv, sC0, sRk, sGo = range(48, 53)
    sLd, sIx, sLf = (53, 54, 55) if lead else (53, sIt, 55)
    sChk = 56
    sT0 = 58
    def C(ins, c=''): A(f'  {ins:<72}; {c}' if c else f'  {ins}')

    A(f'; @launch grid=({NWG},1,1) block=({320 if hop else 256},1,1) lds={lds_bytes}')
    A('.amdgcn_target "amdgcn-amd-amdhsa--gfx950"')
    A('.text')
    A(f'.globl {name}_kernel')
    A('.p2align 8')
    A(f'.type {name}_kernel,@function')
    A(f'{name}_kernel:')
    C('s_load_dwordx8 s[4:11], s[0:1], 0', 'q k v omega')
    C('s_load_dwordx4 s[12:15], s[0:1], 32', 'out debug')
    C('s_load_dwordx2 s[16:17], s[0:1], 48', 'ws')
    C(f'v_lshrrev_b32 v{vT}, 6, v0', 'wave')
    C(f's_cmp_ge_u32 s2, {NWG}')
    C('s_cbranch_scc1 L_end')
    if stamp or span: C(f's_memrealtime s[{sT0}:{sT0+1}]')
    if delay:
        for x in (f's_and_b32 s3, s2, {delay[0]}', f's_cmp_lg_u32 s3, {delay[1]}', 's_cbranch_scc1 L_nodelay', 's_memrealtime s[58:59]', 's_waitcnt lgkmcnt(0)',
                  f's_mul_i32 s62, s2, {delay[3] if len(delay) > 3 else 0}', f's_add_u32 s62, s62, {delay[2]}'): C(x)
        A('L_delay:')
        for x in ('s_memrealtime s[60:61]', 's_waitcnt lgkmcnt(0)', 's_sub_u32 s60, s60, s58', 's_cmp_lt_u32 s60, s62', 's_cbranch_scc1 L_delay'): C(x)
        A('L_nodelay:')
    C(f'v_readfirstlane_b32 s{sWave}, v{vT}')
    C(f'v_lshlrev_b32 v{vSlot}, 3, v0', 'exchange slot of output element d = thread id (waves 2,3: out of range)')
    C(f'v_and_b32 v{vLane}, 63, v0', 'lane')
    if hop:
        C(f's_cmp_eq_u32 s{sWave}, 4')
        C('s_cbranch_scc1 L_warm')
    C(f's_lshr_b32 s{sHead}, s2, 1')
    C(f's_and_b32 s{sSide}, s2, 1')
    C(f'v_bfrev_b32 v{vVo}, v{vT}')
    C(f'v_lshrrev_b32 v{vVo}, 22, v{vVo}', 'wave bits -> address bits 9,8')
    C(f'v_lshrrev_b32 v{vSq}, 4, v{vLane}')
    C(f'v_lshlrev_b32 v{vSq}, 6, v{vSq}', 'slab*64')
    C(f'v_and_b32 v{vDen}, 3, v{vLane}')
    C(f'v_bfe_u32 v{vY}, v{vLane}, 2, 2')
    C(f'v_lshl_or_b32 v{vPq}, v{vDen}, 4, v{vSq}', 'byte in a k / q row: ((l&3) + 4*(l>>4))*16')
    C(f'v_or_b32 v{vKo}, v{vPq}, v{vVo}')
    C(f'v_lshl_or_b32 v{vKo}, v{vY}, 12, v{vKo}', 'k row (l>>2)&3 -> address bits 12,13')
    def offs(src):
        C(f'v_mov_b32 v{vOff}, v{src}')
    offs(vKo)
    C(f'v_lshl_or_b32 v{vPqe}, v{vY}, 4, v{vSq}')
    C(f'v_lshl_or_b32 v{vPqe}, v{vDen}, 8, v{vPqe}', 'omega row l&3 (+4), byte (((l>>2)&3) + 4*(l>>4))*16')
    def sbase():
        C(f's_lshl_b32 s{sKV}, s{sHead}, 20')
        C(f's_lshl_b32 s3, s{sSide}, {SPLIT}')
        C(f's_sub_u32 s{sS+2}, 0x100000, s3', 'bytes left in this head')
        C(f's_add_u32 s{sKV}, s{sKV}, s3', 'byte offset of this half in k / v')
        C(f's_mul_i32 s{sOff}, s{sSide}, {hex(tmask)}' if rotk else f's_mov_b32 s{sOff}, 0')
    sbase()
    C(f's_lshl_b32 s{sQO}, s{sHead}, 8', 'byte offset in q / out')
    C(f's_lshl_b32 s3, s{sHead}, 10', 'byte offset in ws')
    C(f's_mov_b32 s{sS+3}, 0x20000')
    C(f's_mov_b32 s{sQ+2}, 256')
    C(f's_mov_b32 s{sQ+3}, 0x20000')
    C(f's_mov_b32 s{sOm+2}, 2048')
    C(f's_mov_b32 s{sOm+3}, 0x20000')
    C(f's_mov_b32 s{sWs+2}, {512 if half else 1024}')
    C(f's_mov_b32 s{sWs+3}, 0x20000')
    def issue(n, tov=None):
        o = (Mu if n & 1 else 0) + (Mt if n & 2 else 0)
        C(f'buffer_load_dwordx4 {r4(B(n))}, v{vOff}, s[{sS}:{sS+3}], s{sOff} offen' + (f' offset:{o}' if o else '') + ' nt')
        if n % 8 == 3:
            C(f's_bitset1_b32 s{sOff}, {I2}')
        if n % 8 == 7:
            C(f's_or_b32 s{sOff}, s{sOff}, {hex(~tmask & 0xffffffff)}')
            C(f's_add_u32 s{sOff}, s{sOff}, 1')
            C(f's_and_b32 s{sOff}, s{sOff}, {hex(tmask)}', 'next trip')
            if tov is not None:
                C(f's_cmp_eq_u32 s{sCnt}, 2')
                C(f's_cbranch_scc1 L_tov{tov}')
                A(f'L_tov{tov}_back:')
    C('s_waitcnt lgkmcnt(0)')
    C(f's_add_u32 s{sWs}, s16, s3')
    C(f's_addc_u32 s{sWs+1}, s17, 0')
    C(f'buffer_load_dword v{vOld}, v{vSlot}, s[{sWs}:{sWs+3}], 0 offen offset:4 sc0 sc1', 'stale phase bits')
    C(f's_add_u32 s{sS}, s6, s{sKV}')
    C(f's_addc_u32 s{sS+1}, s7, 0')
    issue(0)
    C(f's_mov_b32 s{sOm}, s10')
    C(f's_mov_b32 s{sOm+1}, s11')
    C(f'buffer_load_dwordx4 {r4(vOm)}, v{vPqe}, s[{sOm}:{sOm+3}], 0 offen')
    C(f'buffer_load_dwordx4 {r4(vOm+4)}, v{vPqe}, s[{sOm}:{sOm+3}], 0 offen offset:1024')
    C(f's_add_u32 s{sQ}, s4, s{sQO}')
    C(f's_addc_u32 s{sQ+1}, s5, 0')
    C(f'buffer_load_dwordx4 {r4(vQ)}, v{vPq}, s[{sQ}:{sQ+3}], 0 offen')
    for n in range(1, W0): issue(n)
    C(f's_add_u32 s{sVb}, s8, s{sKV}')
    C(f's_addc_u32 s{sVb+1}, s9, 0')
    C(f's_add_u32 s{sQ}, s12, s{sQO}', 'the q descriptor becomes the out descriptor')
    C(f's_addc_u32 s{sQ+1}, s13, 0')
    C(f's_lshl_b32 s{sBoss}, s2, 2')
    C(f's_add_u32 s{sBoss}, s{sBoss}, s{sWave}', 'global wave number')
    C(f's_and_b32 s{sRef}, s{sBoss}, 0x3e3')
    if noref: C(f's_mov_b32 s{sRef}, 0')
    C(f's_cmp_lg_u32 s{sRef}, 2')
    C('s_cbranch_scc1 L_noref')
    C(f'v_mul_u32_u24 v{vBase}, {hex(WS_STEP)}, v{vLane}')
    C(f'v_add_u32 v{vBase}, {hex(WS_RANK)}, v{vBase}')
    C(f's_mov_b32 s{sRk}, 0')
    C(f's_mov_b32 s{sGo}, 0')
    if lead:
        C(f's_cmp_eq_u32 s{sSide}, {lead[0]}')
        C(f's_cselect_b32 s{sLd}, {lead[1]}, -1')
    C('s_mov_b32 exec_hi, 0')
    C(f'global_load_dword v{vBase}, v{vBase}, s[16:17] sc0 sc1', 'what the arrival counters of the 32 trips hold on entry')
    C('s_mov_b64 exec, -1')
    A('L_noref:')
    C('s_getreg_b32 s3, hwreg(HW_REG_XCC_ID, 0, 3)')
    C(f's_mul_i32 s3, s3, {hex(WS_STEP)}')
    C(f's_add_u32 s3, s3, {hex(WS_PACE)}')
    C(f'v_mov_b32 v{vPadr}, s3', 'progress word of this die')
    C(f's_mov_b32 s{sIt}, 0')
    C(f's_mov_b32 s{sInv}, 1')
    C(f's_mov_b32 s{sC0}, 0')
    if lastfar:
        C(f's_cmp_eq_u32 s{sSide}, {lead[0]}')
        C(f's_cselect_b32 s{sLf}, 0, {lastfar + 1}')
    C(f's_lshr_b32 s{sTgt}, s{sHead}, 2')
    C(f's_and_b32 s{sTgt}, s{sTgt}, {look-1}')
    C(f's_add_u32 s{sTgt}, s{sTgt}, {NIT-look}', 'K trip after which waves 0,1 look at flag 0')
    C(f's_cmp_lt_u32 s{sWave}, 2')
    C(f's_cselect_b32 s{sTgt}, s{sTgt}, -1')
    C(f's_cselect_b32 s{sChk}, {chk}, -1', 'V trip after which they fetch flag 1')
    C(f'v_mov_b32 v{vZero}, 0')
    C(f'v_mov_b32 v{vF0}, 0')
    C(f'v_lshrrev_b32 v{vRed}, 6, v{vSlot}', 'final reduce: d -> (d>>3)*16 + ((d>>2)&1)*256 + (d&3)*4')
    C(f'v_lshlrev_b32 v{vRed}, 4, v{vRed}')
    C(f'v_and_b32 v{vY}, 1, v{vY}')
    C(f'v_lshl_add_u32 v{vRed}, v{vY}, 8, v{vRed}')
    C(f'v_lshl_add_u32 v{vRed}, v{vDen}, 2, v{vRed}')
    C(f's_mul_i32 s3, s{sWave}, {LW}')
    C(f'v_lshl_add_u32 v{vWr}, v{vLane}, 4, s3')
    C(f'v_lshl_add_u32 v{vLds}, v{vLane}, 2, s3')
    C(f'v_and_b32 v{vY}, 15, v{vLane}')
    C(f'v_lshl_or_b32 v{vVo}, v{vY}, 4, v{vVo}')
    C(f'v_lshl_or_b32 v{vVo}, v{vSq}, 6, v{vVo}', 'v: byte (l&15)*16 of row l>>4 -> address bits 12,13')
    C(f'v_mov_b32 v{vCsq}, 0x{f2u(c_sq):08x}', '-0.5 * D^-0.25')
    C(f's_mov_b32 s{sCe}, 0x{f2u(c_e):08x}', 'D^-0.25 * log2(e)')
    C(f'v_mov_b32 v{vDen}, 0')
    for i in range(4):
        C(f'v_mov_b32 v{vAcc0+i}, 0')
        C(f'v_mov_b32 v{vAcc1+i}, 0')
    C(f'v_and_b32 v{vY}, 1, v{vLane}')
    C(f'v_cmp_eq_u32 vcc, 1, v{vY}')
    C(f'v_mov_b32 v{vC}, 0x0c0c0100')
    C(f'v_mov_b32 v{vC+1}, 0x01000c0c')
    C(f'v_cndmask_b32 v{vC}, v{vC}, v{vC+1}, vcc', 'even tile: low half of the packed pair')
    C(f'v_mov_b32 v{vC+1}, 0x0c0c0302')
    C(f'v_mov_b32 v{vC+2}, 0x03020c0c')
    C(f'v_cndmask_b32 v{vC+1}, v{vC+1}, v{vC+2}, vcc', 'odd tile: high half')
    C(f'v_mov_b32 v{vC+2}, 0x0c0c0c0c')
    C(f'v_bfe_u32 v{vY}, v{vLane}, 1, 2')
    for j in range(4):
        C(f'v_cmp_eq_u32 vcc, {j}, v{vY}')
        C('s_nop 1')
        C(f'v_cndmask_b32 v{vSel+j}, v{vC+2}, v{vC}, vcc')
        C(f'v_cndmask_b32 v{vSel+4+j}, v{vC+2}, v{vC+1}, vcc')
    def dot(k, i): C(f'v_dot2_f32_bf16 v{vSq}, v{k+i}, v{k+i}, ' + ('0' if i == 0 else f'v{vSq}'))
    def sgemm(): C(f'v_mfma_f32_16x16x4_f32 {r4(vC)}, v{vSq}, v{vCsq}, 0')
    def xdl(k, h): C(f'v_mfma_f32_16x16x32_bf16 {r4(vD+4*h)}, {r4(k)}, {r4(vOm+4*h)}, {r4(vC)}')
    def comb(u, h, i):
        b = 2 * u + h
        r = [x for x in range(4) if x != b][i]
        src1 = vD + 4 * h + b if i == 0 else vTa + h
        dst, mask = (vT, 1 << b) if i == 2 else (vTa + h, 15)
        C(f'v_add_f32_dpp v{dst}, v{vD + 4*h + r}, v{src1} row_ror:{(4 * (b - r)) % 16} row_mask:0xf bank_mask:{hex(mask)}')
    def nop(): C('s_nop 0')
    RED = ('quad_perm:[1,0,3,2]', 'quad_perm:[2,3,0,1]', 'row_half_mirror')
    def red(y, i): C(f'v_add_f32_dpp v{y}, v{y}, v{y} {RED[i]} row_mask:0xf bank_mask:0xf')
    C(f's_waitcnt vmcnt({W0 + 2})')
    issue(W0)
    C(f's_waitcnt vmcnt({W0})')
    for i in range(4): dot(vQ, i)
    C('s_mov_b64 vcc, -1', 'vcc != 0: wide window')
    C('s_nop 1')
    sgemm(); xdl(vQ, 0); xdl(vQ, 1)
    for n in range(W0 + 1, D + 1):
        C(f's_waitcnt vmcnt({W0 - 1})')
        issue(n)
    C('s_nop 7')
    comb(0, 0, 0); comb(0, 1, 0); nop(); comb(0, 0, 1); comb(0, 1, 1); nop(); comb(0, 0, 2)
    C('s_nop 1')
    comb(0, 1, 2)
    C('s_nop 1')
    C(f'v_mov_b32_dpp v{vT}, v{vT} row_ror:8 row_mask:0xf bank_mask:0xc')
    C(f'v_mul_f32 v{vT}, s{sCe}, v{vT}')
    C(f'v_exp_f32 v{vT}, v{vT}')
    C(f'v_mov_b32 v{vY}, 0x{f2u(1e-6):08x}')
    C(f'v_fmac_f32 v{vY}, 0x{f2u(c_m):08x}, v{vT}', 'phi_q[m], m = l&7')
    C(f'v_mul_f32 v{vPq}, 0x{f2u(c_m):08x}, v{vY}')
    C(f'v_mul_f32 v{vPqe}, 0x{f2u(1e-6):08x}, v{vY}')
    nlab = [0]
    def wait(n, ph, far):
        j = n - 1
        cnt = lambda w: w - 1 + (1 if j < w else 0)
        if far:
            C(f's_waitcnt vmcnt({cnt(7)})'); return
        lo, hi = (int(x[j]) for x in WIN[ph])
        assert lo <= hi <= 6
        if lo != hi:
            nlab[0] += 1
            if worder == 0: C(f's_waitcnt vmcnt({cnt(hi)})')
            C(f's_cbranch_vccnz L_w{nlab[0]}')
            C(f's_waitcnt vmcnt({cnt(lo)})')
            A(f'L_w{nlab[0]}:')
            if worder == 1: C(f's_waitcnt vmcnt({cnt(hi)})')
        else:
            C(f's_waitcnt vmcnt({cnt(lo)})')
    def pload(): C(f'global_load_dword v{vPace}, v{vPadr}, s[16:17] nt', 'progress of the reference wave')
    def ptop(ph):
        C(f's_cmp_eq_u32 s{sRef}, 2')
        C(f's_cbranch_scc1 L_pub{ph}')
        pload()
        A(f'L_pub{ph}_back:')
    def pend(ph):
        C(f'v_readfirstlane_b32 s3, v{vPace}')
        C(f's_add_u32 s{sIt}, s{sIt}, 1')
        C(f's_cmp_lg_u32 s{sInv}, 0')
        C(f's_cbranch_scc1 L_inv{ph}')
        A(f'L_inv{ph}_back:')
        C(f's_cmp_ge_u32 s3, s{sIt}', 'the reference began this trip first: wide window next')
        C('s_cselect_b64 vcc, -1, 0')
    def far(lbl):
        if fbo:
            C(f's_mul_i32 s3, s{sBoss}, s{sCnt}'); C('s_and_b32 s3, s3, 2'); C(f's_cmp_eq_u32 s{sRef}, 2'); C('s_cselect_b32 s3, 0, s3'); C(f's_add_u32 s3, s3, s{sIt}')
        C(f's_cmp_gt_u32 s3, s{sIt}', 'a whole trip behind: widest window')
        C(f's_cbranch_scc1 {lbl}')
    A('L_pass:')
    for i in range(4): dot(B(0), i)
    C(f's_mov_b32 s{sCnt}, {NIT}')
    C('s_nop 1')
    sgemm(); xdl(B(0), 0); xdl(B(0), 1)
    def kbody(fr):
        for n in range(1, NB + 1):
            wait(n, 'K', fr); issue(n + D, '2' if fr else '')
            k = B(n)
            if n & 1:
                y = vY + (((n - 3) // 2) & 1)
                dot(k, 0); red(y, 0); dot(k, 1); dot(k, 2); red(y, 1); dot(k, 3)
                comb(0, 0, 0); red(y, 2); comb(0, 1, 0)
                sgemm()
                comb(0, 0, 1); comb(0, 1, 1)
                if n % 4 == 1: C(f'v_cvt_pk_bf16_f32 v{vP}, v{vY}, v{vY+1}')
                else: nop()
                comb(0, 0, 2); xdl(k, 0)
                if n % 4 == 1: C(f'ds_write_b32 v{vLds}, v{vP} offset:{(n // 4) * 256}')
                else: nop()
                comb(0, 1, 2); xdl(k, 1)
            else:
                y = vY + (((n - 2) // 2) & 1)
                for i in range(4): dot(k, i)
                nop()
                comb(1, 0, 0); comb(1, 1, 0)
                sgemm()
                comb(1, 0, 1); comb(1, 1, 1); nop()
                comb(1, 0, 2); xdl(k, 0); nop()
                comb(1, 1, 2)
                C(f'v_mul_f32 v{vT}, s{sCe}, v{vT}')
                C(f'v_exp_f32 v{vT}, v{vT}')
                xdl(k, 1)
                C(f'v_fma_f32 v{y}, v{vT}, v{vPq}, v{vPqe}', 'phi_q[m] * phi_k[key,m]')
                C(f'v_add_f32 v{vDen}, v{vDen}, v{y}')
    A('L_kloop:')
    ptop('K'); kbody(False)
    A('L_kend:')
    C(f'v_add_u32 v{vLds}, 512, v{vLds}')
    pend('K')
    C(f's_sub_u32 s{sCnt}, s{sCnt}, 1')
    C(f's_cmp_eq_u32 s{sCnt}, s{sTgt}')
    C('s_cbranch_scc1 L_look')
    far('L_kfar')
    C(f's_cmp_lg_u32 s{sCnt}, 0')
    C('s_cbranch_scc1 L_kloop')
    A('L_kdone:')
    steps = ('quad_perm:[1,0,3,2] row_mask:0xf', 'quad_perm:[2,3,0,1] row_mask:0xf', 'row_half_mirror row_mask:0xf',
             'row_mirror row_mask:0xf', 'row_bcast:15 row_mask:0xa', 'row_bcast:31 row_mask:0xc')
    fill = [[lambda: red(vY+1, 0), lambda: C(f'v_subrev_u32 v{vLds}, 0x1f00, v{vLds}')],
            [lambda: red(vY+1, 1), lambda: C(f'ds_read_b32 v{vP}, v{vLds}')],
            [lambda: red(vY+1, 2), lambda: C(f'ds_read_b32 v{vP+1}, v{vLds} offset:256')],
            [lambda: C(f'v_cvt_pk_bf16_f32 v{vSq}, v{vY}, v{vY+1}'), lambda: C(f'ds_write_b32 v{vLds}, v{vSq} offset:{0x1f00}')],
            [lambda: C(f's_lshl_b32 s3, s{sWave}, 2'), lambda: C(f'v_mov_b32 v{vY}, s3')],
            [lambda: C(f's_mov_b32 s{sCnt}, {NIT}')]]
    for i, st in enumerate(steps):
        src = vDen if i == 0 else vT
        C(f'v_add_f32_dpp v{vT}, v{src}, v{src} {st} bank_mask:0xf')
        for f in fill[i]: f()
    C(f'v_readlane_b32 s3, v{vT}, 63')
    def perms(tile):
        p = vP + ((tile >> 1) & 1)
        for j in range(4):
            C(f'v_perm_b32 v{vA+j}, v{p}, v{p}, v{vSel + 4 * (tile & 1) + j}')
    C('s_waitcnt lgkmcnt(0)')
    perms(0)
    C(f'v_min_u32 v{vF0}, 1, v{vF0}')
    C('s_bitset0_b32 s3, 31')
    C(f'v_lshl_or_b32 v{vT}, v{vF0}, 31, s3', 'sign bit set: the stale phase bits cannot be trusted')
    C(f'ds_write_b32 v{vY}, v{vT} offset:{LDS_DEN}')
    C(f's_cmp_eq_u32 s{sBoss}, {BOSS}')
    C('s_cbranch_scc1 L_flag1')
    def mm(acc, n): C(f'v_mfma_f32_16x16x32_bf16 {r4(acc)}, {r4(vA)}, {r4(B(n))}, {r4(acc)}')
    def vbody(fr):
        for t in range(NB // 2):
            n = 2 * t
            mm(vAcc0, n)
            wait(n + 1, 'V', fr); issue(n + 1 + D)
            mm(vAcc1, n + 1)
            if t & 1: C('s_waitcnt lgkmcnt(1)')
            perms(t + 1)
            if not (t & 1):
                C(f'ds_read_b32 v{vP + ((t >> 1) & 1)}, v{vLds} offset:{(t // 2 + 2) * 256}')
            if t == NB // 2 - 1:
                C(f'v_add_u32 v{vLds}, 512, v{vLds}')
                C(f's_sub_u32 s{sCnt}, s{sCnt}, 1')
            wait(n + 2, 'V', fr); issue(n + 2 + D)
    A('L_vloop:')
    ptop('V'); vbody(False)
    A('L_vend:')
    pend('V')
    C(f's_cmp_eq_u32 s{sCnt}, s{sChk}')
    C('s_cbranch_scc1 L_chk')
    far('L_vfar')
    if lastfar:
        C(f's_cmp_le_u32 s{sCnt}, s{sLf}')
        C('s_cbranch_scc1 L_vfar')
    C(f's_cmp_lg_u32 s{sCnt}, 1')
    C('s_cbranch_scc1 L_vloop')
    A('L_vdone:')
    ex_ = [0]
    def lwait(n):
        C(f's_waitcnt vmcnt({NB - 1 - n + ex_[0]})')
        if n == pre:
            C(f'buffer_load_dwordx2 {r2(vPre)}, v{vSlot}, s[{sWs}:{sWs+3}], 0 offen sc0 sc1', 'has the partner deposited already?')
            ex_[0] = 1
            C('s_cbranch_scc1 L_pubL')
            A('L_pubL_back:')
    C(f's_cmp_eq_u32 s{sRef}, 2')
    for t in range(NB // 2):
        n = 2 * t
        mm(vAcc0, n)
        if t == NB // 2 - 1:
            C('s_nop 6')
            C('s_mov_b32 exec_hi, 0')
            C(f'ds_write_b128 v{vWr}, {r4(vAcc0)}', 'rows 0..7 live in lanes 0..31')
            C('s_mov_b64 exec, -1')
        lwait(n + 1)
        mm(vAcc1, n + 1)
        if t < NB // 2 - 1:
            if t == 1: C('s_waitcnt lgkmcnt(0)')
            perms(t + 1)
            lwait(n + 2)
            if n + 2 != pre: nop()
    C(f'v_not_b32 v{vY}, v{vOld}')
    C(f'v_and_b32 v{vY}, 0x80000000, v{vY}', 'sign this launch deposits = opposite of the stale one')
    C('s_nop 4')
    C('s_mov_b32 exec_lo, 0')
    C(f'ds_write_b128 v{vWr}, {r4(vAcc1)}', 'rows 8..15 live in lanes 32..63')
    C('s_mov_b64 exec, -1')
    if pre == 8:
        C(f'buffer_load_dwordx2 {r2(vPre)}, v{vSlot}, s[{sWs}:{sWs+3}], 0 offen sc0 sc1', 'has the partner deposited already?')
        C('s_cbranch_scc1 L_pubL')
        A('L_pubL_back:')
    C(f's_cmp_gt_u32 s{sWave}, {0 if half else 1}')
    C('s_waitcnt lgkmcnt(0)')
    C('s_barrier')
    R = vD
    C(f'ds_read_b128 {r4(vC)}, v{vZero} offset:{LDS_DEN}')
    C('s_cbranch_scc1 L_idle')
    for w in range(4):
        C(f'ds_read2st64_b32 {r2(R+2*w)}, v{vRed} offset0:{w*33} offset1:{w*33+2}')
    C(f'v_lshrrev_b32 v{vWr}, 2, v{vSlot}', 'd*2')
    C('s_waitcnt lgkmcnt(4)')
    C(f'v_or_b32 v{vT}, v{vC}, v{vC+1}')
    C(f'v_pk_add_f32 {r2(vC)}, {r2(vC)}, {r2(vC+2)}')
    C(f'v_readfirstlane_b32 s3, v{vT}')
    C(f'v_add_f32 v{vA+1}, v{vC}, v{vC+1}', 'den of this half')
    C('s_cmp_lt_i32 s3, 0')
    C('s_cbranch_scc1 L_again')
    if eager:
        C(f'v_or_b32 v{vA+3}, v{vA+1}, v{vY}')
        A('L_chk2:')
        C(f's_cmp_eq_u32 s{sAt}, 0', 'no deposit before flag 0 has landed')
        C('s_cbranch_scc1 L_poll')
        C('s_waitcnt lgkmcnt(0)')
        C(f'v_pk_add_f32 {r2(R)}, {r2(R)}, {r2(R+2)}')
        C(f'v_pk_add_f32 {r2(R+4)}, {r2(R+4)}, {r2(R+6)}')
        C(f'v_pk_add_f32 {r2(R)}, {r2(R)}, {r2(R+4)}')
        C(f'v_add_f32 v{vA+2}, v{R}, v{R+1}', 'num of this half')
        C(f'buffer_atomic_swap_x2 {r2(vA+2)}, v{vSlot}, s[{sWs}:{sWs+3}], 0 offen sc0 sc1')
        C(f'v_add_f32 v{vA}, v{R}, v{R+1}')
        C('s_waitcnt vmcnt(1)')
        C(f'v_xor_b32 v{vPre+1}, v{vPre+1}, v{vY}')
        C(f'v_cmp_gt_i32 vcc, 0, v{vPre+1}', 'lanes whose slot was still stale at the early look')
        C('s_cbranch_vccz L_out')
        C('s_waitcnt vmcnt(0)')
        C(f'v_xor_b32 v{vPre+1}, v{vA+3}, v{vY}', 'sign clear: the partner deposited first')
        C(f'v_mov_b32 v{vPre}, v{vA+2}')
        C(f'v_cmpx_le_i32 vcc, 0, v{vPre+1}')
        C('s_cbranch_execz ' + ('L_fin' if stamp or span else 'L_end'))
    else:
        C('s_waitcnt lgkmcnt(0)')
        C(f'v_pk_add_f32 {r2(R)}, {r2(R)}, {r2(R+2)}')
        C(f'v_pk_add_f32 {r2(R+4)}, {r2(R+4)}, {r2(R+6)}')
        C('s_waitcnt vmcnt(0)')
        C(f'v_xor_b32 v{vPre+1}, v{vPre+1}, v{vY}')
        C(f'v_pk_add_f32 {r2(R)}, {r2(R)}, {r2(R+4)}')
        C(f'v_cmp_gt_i32 vcc, 0, v{vPre+1}', 'lanes whose slot was still stale')
        C(f'v_add_f32 v{vA}, v{R}, v{R+1}', 'num of this half')
        if not noswap: C('s_cbranch_vccnz L_swap')
    A('L_out:')
    C(f'v_pk_add_f32 {r2(vA)}, {r2(vA)}, {r2(vPre)}')
    C(f'v_add_f32 v{vA+1}, 0x{f2u(1e-6):08x}, v{vA+1}')
    C(f'v_rcp_f32 v{vA+1}, v{vA+1}')
    nop()
    C(f'v_mul_f32 v{vA}, v{vA}, v{vA+1}')
    C(f'v_cvt_pk_bf16_f32 v{vA}, v{vA}, v{vA}')
    C(f'buffer_store_short v{vA}, v{vWr}, s[{sQ}:{sQ+3}], 0 offen sc1')
    if stamp or span: C('s_branch L_fin')
    A('L_end:')
    C('s_endpgm')
    if not eager:
        A('L_swap:')
        C(f'v_mov_b32 v{vPre}, v{vA}')
        C(f'v_or_b32 v{vPre+1}, v{vA+1}, v{vY}')
        C(f's_cmp_eq_u32 s{sAt}, 0', 'no deposit before flag 0 has landed')
        C('s_cbranch_scc1 L_poll')
        C(f'buffer_atomic_swap_x2 {r2(vPre)}, v{vSlot}, s[{sWs}:{sWs+3}], 0 offen sc0 sc1')
        C('s_waitcnt vmcnt(0)')
        C(f'v_xor_b32 v{vPre+1}, v{vPre+1}, v{vY}', 'sign clear: the partner deposited first')
        C(f'v_cmpx_le_i32 vcc, 0, v{vPre+1}')
        C('s_cbranch_execnz L_out')
        C('s_branch L_fin' if stamp or span else 's_endpgm')
    A('L_idle:                                    ; waves 2,3 are done unless a second pass is needed')
    C('s_waitcnt lgkmcnt(0)')
    C(f'v_or_b32 v{vT}, v{vC}, v{vC+1}')
    nop()
    C(f'v_readfirstlane_b32 s3, v{vT}')
    C('s_cmp_lt_i32 s3, 0')
    C('s_cbranch_scc1 L_again')
    C('s_endpgm')
    A('L_pubL:                                    ; leave no dirty line behind')
    C('s_mov_b64 exec, 1')
    C(f'global_store_dword v{vPadr}, v{vPace}, s[16:17] sc0 sc1')
    C('s_mov_b64 exec, -1')
    C('s_branch L_pubL_back')
    for ph in 'KV':
        A(f'L_pub{ph}:                                    ; reference wave: publish the trip, compare with the other dies')
        C(f's_add_u32 s3, s{sIt}, 1')
        C(f'v_mov_b32 v{vPace}, s3')
        C('s_mov_b64 exec, 1')
        C(f'global_store_dword v{vPadr}, v{vPace}, s[16:17]')
        C('s_mov_b64 exec, -1')
        if ph == 'K':
            C(f's_cmp_eq_u32 s{sIt}, 0')
            C(f's_cbranch_scc1 L_pub{ph}_back')
        if lead:
            C(f's_cmp_eq_u32 s{sIt}, s{sLd}')
            C(f's_cbranch_scc1 L_pub{ph}_back')
            C(f's_cmp_gt_u32 s{sIt}, s{sLd}')
            C(f's_subb_u32 s{sIx}, s{sIt}, 0')
        C(f'v_readlane_b32 s3, v{vBase}, s{sIx}')
        C('s_waitcnt lgkmcnt(0)')
        C(f's_sub_u32 s{sRk}, s{sRk}, s{sGo}', 'how many references began the previous trip earlier')
        C(f's_cmp_ge_u32 s{sRk}, {thr}')
        C('s_cselect_b64 vcc, -1, 0')
        C(f's_mov_b32 s{sGo}, s3')
        C(f's_mul_i32 s3, s{sIx}, {hex(WS_STEP)}')
        C(f's_add_u32 s3, s3, {hex(WS_RANK)}')
        C(f's_mov_b32 s{sRk}, 1')
        C(f's_atomic_add s{sRk}, s[16:17], s3 glc')
        C(f's_branch L_pub{ph}_back')
        A(f'L_inv{ph}:                                    ; until the progress word changes it is not known to be from this launch')
        C(f's_cmp_eq_u32 s{sIt}, 1')
        C(f's_cselect_b32 s{sC0}, s3, s{sC0}')
        C(f's_cmp_eq_u32 s3, s{sC0}')
        C(f's_cselect_b32 s{sInv}, 1, 0')
        C(f's_cbranch_scc0 L_inv{ph}_back')
        C(f's_and_b32 s3, s{sIt}, -2', 'alternate the two windows')
        C(f's_branch L_inv{ph}_back')
    def tov(sfx):
        A(f'L_tov{sfx}:                                     ; the issue side moves on from K to V')
        C(f's_mov_b32 s{sS}, s{sVb}')
        C(f's_mov_b32 s{sS+1}, s{sVb+1}')
        C(f's_mul_i32 s{sOff}, s{sSide}, {hex(tmask)}' if rotk else f's_mov_b32 s{sOff}, 0')
        offs(vVo)
        C(f's_cmp_lg_u32 s{sBoss}, {BOSS}')
        C(f's_cbranch_scc1 L_tov{sfx}_back')
        C(f's_mov_b32 s{sAt}, 1')
        C(f's_atomic_add s{sAt}, s[14:15], 0 glc', 'flag 0: phase bits read from now on are not trusted')
        C(f's_branch L_tov{sfx}_back')
    tov('')
    A('L_flag1:                                   ; flag 0 has landed (lgkmcnt(0) above): say so in a line that may be cached')
    C(f's_mov_b32 s{sAt}, 1')
    C(f's_atomic_add s{sAt}, s[14:15], 128')
    C(f's_mov_b32 s{sBoss}, -1')
    C('s_branch L_vloop')
    A('L_look:                                    ; the stale phase bits are in registers by now')
    C(f'global_load_dword v{vF0}, v{vZero}, s[14:15] sc0 sc1')
    if force:
        C('s_waitcnt vmcnt(0)')
        C(f's_mul_i32 s3, s{sBoss}, 0x9e3779b1'); C('s_lshr_b32 s3, s3, 29'); C(f's_cmp_lt_u32 s3, {force}')
        C('s_cselect_b32 s3, 1, 0'); C(f'v_or_b32 v{vF0}, s3, v{vF0}')
    C('s_branch L_kloop')
    A('L_chk:')
    C(f's_load_dword s{sAt}, s[14:15], 128')
    C('s_branch L_vloop')
    def vfar():
        A('L_vfar:')
        C(f's_cmp_eq_u32 s{sCnt}, 1')
        C('s_cbranch_scc1 L_vdone')
        pload(); vbody(True)
        C('s_branch L_vend')
    if lastfar: vfar()
    A('L_hopend:')
    A('L_poll:                                    ; flag 1 not seen: raise flag 0 here and wait until it has landed')
    C(f's_mov_b32 s{sAt}, 1')
    C(f's_atomic_add s{sAt}, s[14:15], 0 glc')
    C('s_waitcnt lgkmcnt(0)')
    C(f's_mov_b32 s{sAt}, 1')
    C('s_branch L_chk2' if eager else 's_branch L_swap')
    A('L_again:                                   ; started too late to trust the phase bits: do the other half too')
    C('s_waitcnt vmcnt(0) lgkmcnt(0)')
    C('s_barrier')
    C(f's_mov_b32 s{sWs+2}, 0', 'no exchange: the slot reads as a zero deposit')
    C(f'v_mov_b32 v{vOld}, -1')
    C(f's_mul_i32 s3, s{sWave}, {LW}')
    C(f'v_lshl_add_u32 v{vWr}, v{vLane}, 4, s3')
    C(f's_mov_b32 s{sTgt}, -1')
    C(f'v_mov_b32 v{vF0}, 0')
    C(f's_xor_b32 s{sSide}, s{sSide}, 1')
    sbase()
    C(f's_add_u32 s{sS}, s6, s{sKV}')
    C(f's_addc_u32 s{sS+1}, s7, 0')
    C(f's_add_u32 s{sVb}, s8, s{sKV}')
    C(f's_addc_u32 s{sVb+1}, s9, 0')
    offs(vKo)
    C(f'v_subrev_u32 v{vLds}, 0x1f00, v{vLds}')
    for n in range(D + 1): issue(n)
    C(f's_waitcnt vmcnt({D})')
    C('s_branch L_pass')
    A('L_kfar:                                    ; the same trips with 7 loads in flight')
    C(f's_cmp_eq_u32 s{sCnt}, 0')
    C('s_cbranch_scc1 L_kdone')
    pload(); kbody(True)
    C('s_branch L_kend')
    tov('2')
    if not lastfar: vfar()
    if stamp:
        t = sT0
        A('L_fin:')
        for x in (f's_mov_b64 exec, -1', f's_cmp_lg_u32 s{sWave}, 0', 's_cbranch_scc1 L_end', f's_memrealtime s[{t+2}:{t+3}]',
                  f's_getreg_b32 s{t+4}, hwreg(HW_REG_XCC_ID)', f's_getreg_b32 s{t+5}, hwreg(HW_REG_HW_ID)', 's_waitcnt lgkmcnt(0)',
                  's_lshl_b32 s3, s2, 5', 's_add_u32 s3, s3, 0x1000000'): C(x)
        for i in range(6): C(f'v_mov_b32 v{12+i}, s{t+i}')
        for x in ('v_mov_b32 v18, s3', 's_mov_b64 exec, 1', 'global_store_dwordx4 v18, v[12:15], s[16:17]',
                  'global_store_dwordx2 v18, v[16:17], s[16:17] offset:16', 's_endpgm'): C(x)
    if span:
        t = sT0
        A('L_fin:')
        def spin(lbl, lim):
            A(lbl + ':')
            for x in (f's_memrealtime s[{t+2}:{t+3}]', 's_waitcnt lgkmcnt(0)', f's_sub_u32 s{t+2}, s{t+2}, s{t}', f's_cmp_lt_u32 s{t+2}, {lim}', f's_cbranch_scc1 {lbl}'): C(x)
        for x in ('s_mov_b64 exec, -1', f's_memrealtime s[{t+2}:{t+3}]', 's_lshl_b32 s3, s2, 1', f's_add_u32 s3, s3, s{sWave}', 's_lshl_b32 s3, s3, 8',
                  's_add_u32 s3, s3, 0x1000000', 'v_mov_b32 v1, s3', 's_waitcnt lgkmcnt(0)', f'v_mov_b32 v2, s{t+2}', 's_mov_b64 exec, 1',
                  'global_store_dword v1, v2, s[16:17] sc0 sc1', 's_mov_b64 exec, -1', 's_cmp_lg_u32 s3, 0x1000000', 's_cbranch_scc1 L_end'): C(x)
        spin('L_sp1', 9000)
        for x in ('v_lshlrev_b32 v1, 8, v0', 'v_add_u32 v1, 0x1000000, v1', 'v_mov_b32 v3, 0'): C(x)
        for j in range(8):
            for x in ('global_load_dword v2, v1, s[16:17] sc0 sc1', 'v_add_u32 v1, 0x4000, v1', 's_waitcnt vmcnt(0)', f'v_subrev_u32 v2, s{t}, v2', 'v_max_u32 v3, v3, v2'): C(x)
        C(f's_mov_b32 s{t+5}, 0'); C(f's_mov_b32 s{t+4}, 0')
        A('L_sp3:')
        for x in ('s_nop 4', f'v_readlane_b32 s{t+3}, v3, s{t+4}', 's_nop 1', f's_max_u32 s{t+5}, s{t+5}, s{t+3}', f's_add_u32 s{t+4}, s{t+4}, 1',
                  f's_cmp_lt_u32 s{t+4}, 64', 's_cbranch_scc1 L_sp3', f's_sub_u32 s{t+5}, s{t+5}, 3500', f's_mul_i32 s{t+5}, s{t+5}, 20',
                  f's_add_u32 s{t+5}, s{t+5}, 15000', f's_min_u32 s{t+5}, s{t+5}, 60000'): C(x)
        spin('L_sp2', f's{t+5}')
        C('s_endpgm')
    A('.section .rodata,"a"')
    A('.p2align 6')
    A(f'.amdhsa_kernel {name}_kernel')
    A(f'  .amdhsa_next_free_vgpr {nvgpr}')
    A(f'  .amdhsa_next_free_sgpr {64 if stamp or span or delay else 57}')
    A(f'  .amdhsa_accum_offset {(nvgpr+3)//4*4}')
    A('  .amdhsa_group_segment_fixed_size 0')
    A('  .amdhsa_kernarg_size 56')
    A('  .amdhsa_user_sgpr_count 2')
    A('  .amdhsa_user_sgpr_kernarg_segment_ptr 1')
    A('  .amdhsa_system_sgpr_workgroup_id_x 1')
    A('.end_amdhsa_kernel')
    if hop: L = addhops(L, hopstart, hop)
    else: L.remove('L_hopend:')
    return '\n'.join(L) + '\n'

def addhops(lines, start, step):
    open('_h.s', 'w').write('\n'.join(lines).replace('s_cbranch_scc1 L_warm', 's_cbranch_scc1 L_end') + '\n')
    subprocess.check_call(['clang', '-x', 'assembler', '-target', 'amdgcn-amd-amdhsa', '-mcpu=gfx950', '-c', '_h.s', '-o', '_h.o'])
    d = subprocess.check_output(['llvm-objdump', '-d', '--mcpu=gfx950', '_h.o']).decode()
    sizes = [4 * len(m.group(1).split()) for m in re.finditer(r'// [0-9A-F]{12}: ([0-9A-F ]+?)(?: <.*)?$', d, re.M)]
    out = []; k = 0; addr = 0; on = False; n = 0; last = -1; intext = False; prev = ''; partial = False
    for l in lines:
        st = l.strip()
        isins = intext and l.startswith('  ') and not st.startswith('.')
        if st.endswith('_kernel:'): intext = True
        if st.startswith('.section'): intext = False
        if st.startswith(start + ':'): on = True
        if st == 'L_hopend:':
            out += [f'L_h{n}:', '  s_endpgm',
                    'L_warm:                                    ; wave 4: instruction-cache warm-up, jumps over every memory instruction',
                    '  s_mov_b64 exec, 0', '  s_cbranch_execz L_h0', '  s_endpgm']
            on = False
            continue
        if isins:
            ok = not partial and not prev.startswith(('s_waitcnt vmcnt', 's_cbranch', 'v_cmpx')) and not st.startswith(('buffer_load', 's_waitcnt vmcnt'))
            if on and addr // step != last and ok:
                if st == 's_nop 0':
                    out += [f'L_h{n}:', f'  s_cbranch_execz L_h{n+1}']; n += 1
                    last = addr // step; addr += sizes[k]; k += 1; prev = st
                    continue
                if addr % step >= step // 2 or not (0 < n < 6):
                    out += [f'L_h{n}:', f'  s_cbranch_execz L_h{n+1}']; n += 1
                    last = addr // step; addr += 4
            if re.match(r's_mov_b(32|64) exec', st): partial = not st.startswith('s_mov_b64 exec, -1')
            addr += sizes[k]; k += 1; prev = st
        out.append(l)
    assert k == len(sizes), (k, len(sizes))
    return out

def build(specs, prefix):
    from gen2 import build as b
    b(specs, prefix, gen)

if __name__ == '__main__':
    open(sys.argv[1], 'w').write(gen())
```
